```python
import torch

def _softmax(x, axis=-1):
    return torch.softmax(x, dim=axis)
def _gelu(x):
    return torch.nn.functional.gelu(x, approximate="tanh")
def _silu(x):
    return torch.nn.functional.silu(x)
def _sigmoid(x):
    return torch.sigmoid(x)
def _layernorm(x, axis=-1, eps=1e-5):
    m = x.mean(dim=axis, keepdim=True)
    v = x.var(dim=axis, keepdim=True, unbiased=False)
    return (x - m) / torch.sqrt(v + eps)
def _scatter_add(tgt, idx, src, axis=0):
    return tgt.clone().index_add_(axis, idx, src)
def _segment_sum(src, seg, n):
    out = torch.zeros((n,) + src.shape[1:], dtype=src.dtype)
    return out.index_add_(0, seg, src)
def _pad(x, pw):
    flat = tuple(v for pair in reversed(pw) for v in pair)
    return torch.nn.functional.pad(x, flat)

kernel_name = 'recurrent_scan__sliding_block_cached__moe_arch_mod__prompt'

def setup_inputs():

    _w = (lambda a: (lambda t: t.to(torch.bfloat16) if t.is_floating_point() else t)(torch.as_tensor(a)))
    def _A_setup():
        B, Sq, D = 1, 2048, 512
        Hq, Hkv, Sk, Dh = 32, 8, 2048, 128
        assert Hq % Hkv == 0, (Hq, Hkv)
        return {
            "x": _w((lambda *s: torch.randn(*s, dtype=torch.bfloat16) * 0.05)(B, Sq, D)),
            "k_cache": _w((lambda *s: torch.randn(*s, dtype=torch.bfloat16) * 0.8)(B, Hkv, Sk, Dh)),
            "v_cache": _w((lambda *s: torch.randn(*s, dtype=torch.bfloat16) * 0.2)(B, Hkv, Sk, Dh)),
            "wq": _w((lambda *s: torch.randn(*s, dtype=torch.bfloat16) * 0.8)(D, Hq * Dh) * (D ** -0.5)),
            "wo": _w((lambda *s: torch.randn(*s, dtype=torch.bfloat16) * 0.2)(Hq * Dh, D) * ((Hq * Dh) ** -0.5)),
        }
    _A_in = _A_setup()

    def _B_setup():
        B, S, D, F, C = 1, 2048, 512, 1792, 1
        return {
            "x": _w((lambda *s: torch.randn(*s, dtype=torch.bfloat16) * 0.05)(B, S, D)),
            "w_r": _w((lambda *s: torch.randn(*s, dtype=torch.bfloat16) * 0.2)(D)),
            "w_gate": _w((lambda *s: torch.randn(*s, dtype=torch.bfloat16) * 0.1)(D, F)),
            "w_up": _w((lambda *s: torch.randn(*s, dtype=torch.bfloat16) * 0.1)(D, F)),
            "w_down": _w((lambda *s: torch.randn(*s, dtype=torch.bfloat16) * 0.1)(F, D)),
        }
    _B_in = _B_setup()

    return {
        "A_x": _A_in["x"],
        "A_k_cache": _A_in["k_cache"],
        "A_v_cache": _A_in["v_cache"],
        "A_wq": _A_in["wq"],
        "A_wo": _A_in["wo"],
        "B_x": _B_in["x"],
        "B_w_r": _B_in["w_r"],
        "B_w_gate": _B_in["w_gate"],
        "B_w_up": _B_in["w_up"],
        "B_w_down": _B_in["w_down"],
    }

def reference(A_x, A_k_cache, A_v_cache, A_wq, A_wo, B_x, B_w_r, B_w_gate, B_w_up, B_w_down):
    def _A_ref(x, k_cache, v_cache, wq, wo):
        B, Sq, D = x.shape
        Hq, Dh = 32, 128
        Hkv, Sk = k_cache.shape[1], k_cache.shape[2]
        W = min(4096, max(256, Sk // 4))
        rep = Hq // Hkv
        q = (lambda x, *d: x.permute(*d))((x @ wq).reshape(B, Sq, Hq, Dh), 0, 2, 1, 3)
        k = (lambda x, n, axis: torch.repeat_interleave(x, n, dim=axis))(k_cache[:, :, Sk - W:, :], rep, axis=1)
        v = (lambda x, n, axis: torch.repeat_interleave(x, n, dim=axis))(v_cache[:, :, Sk - W:, :], rep, axis=1)
        scores = torch.einsum("bhqd,bhkd->bhqk", q, k) * (Dh ** -0.5)
        p = _softmax(scores, axis=-1)
        o = torch.einsum("bhqk,bhkd->bhqd", p, v)
        return (lambda x, *d: x.permute(*d))(o, 0, 2, 1, 3).reshape(B, Sq, Hq * Dh) @ wo

    def _B_ref(x, w_r, w_gate, w_up, w_down):
        B, S, D = x.shape
        C = 1
        r = x @ w_r
        idx = torch.argsort(-r, axis=-1)[:, :C]
        idx_e = (lambda x, n, axis: torch.repeat_interleave(x, n, dim=axis))(idx.reshape(B, C, 1), D, axis=2)
        x_sel = (lambda x, i, axis: torch.take_along_dim(x, i, dim=axis))(x, idx_e, axis=1)
        g = _silu(x_sel @ w_gate)
        u = x_sel @ w_up
        y = (g * u) @ w_down
        r_sel = _sigmoid((lambda x, i, axis: torch.take_along_dim(x, i, dim=axis))(r, idx, axis=1))
        y = y * r_sel.reshape(B, C, 1)
        b_off = (torch.arange(B) * S).reshape(B, 1)
        flat_idx = (idx + b_off).reshape(B * C)
        zero = (x * 0.0).reshape(B * S, D)
        upd = _scatter_add(zero, flat_idx, y.reshape(B * C, D), axis=0)
        return x + upd.reshape(B, S, D)

    x = A_x
    xn = _layernorm(x, axis=-1)
    s = _A_ref(xn, A_k_cache, A_v_cache, A_wq, A_wo)
    g = _silu(_B_ref(xn, B_w_r, B_w_gate, B_w_up, B_w_down))
    return x + s * g
```

```python
import re

def regs_of(tok):
    tok = tok.strip()
    neg = tok.startswith('-')
    if neg: tok = tok[1:]
    if tok.startswith('abs(') and tok.endswith(')'): tok = tok[4:-1]
    if tok.startswith('|') and tok.endswith('|'): tok = tok[1:-1]
    m = re.fullmatch(r'([vas])\[(\d+):(\d+)\]', tok)
    if m: return [(m.group(1), i) for i in range(int(m.group(2)), int(m.group(3)) + 1)]
    m = re.fullmatch(r'([vas])(\d+)', tok)
    if m: return [(m.group(1), int(m.group(2)))]
    if tok == 'vcc': return [('vcc', 0)]
    if tok in ('vcc_lo', 'vcc_hi'): return [('vcc', 0)]
    if tok in ('exec', 'exec_lo', 'exec_hi'): return [('exec', 0)]
    if tok == 'm0': return [('m0', 0)]
    return []

TRANS = ('v_exp_f32', 'v_log_f32', 'v_rcp_f32', 'v_rsq_f32', 'v_sqrt_f32', 'v_sin_f32', 'v_cos_f32', 'v_rcp_iflag_f32')

class Ins:
    __slots__ = ('txt', 'op', 'kind', 'rd', 'wr', 'ldsrd', 'ldswr', 'wvm', 'wlg', 'states', 'passes', 'srcc', 'srcab', 'dpp', 'note', 'nowait', 'storedata', 'dotab')
    def __init__(self, txt, ldsrd=(), ldswr=(), note=None, extra_rd=(), extra_wr=()):
        self.txt = txt.strip()
        self.ldsrd = set(ldsrd); self.ldswr = set(ldswr)
        self.wvm = None; self.wlg = None; self.note = note
        self.passes = 0; self.srcc = set(); self.srcab = set(); self.dpp = False; self.states = 1
        self.storedata = set(); self.dotab = set()
        t = self.txt.split(';')[0].strip()
        if not t or t.endswith(':') or t.startswith('.'):
            self.op = ''; self.kind = 'label'; self.rd = set(); self.wr = set(); self.states = 0; return
        parts = t.split(None, 1)
        op = parts[0]; self.op = op
        rest = parts[1] if len(parts) > 1 else ''
        ops = [x.strip() for x in rest.split(',')] if rest else []
        mods = ''
        if ops:
            last = ops[-1].split(None, 1)
            newops = []
            joined = rest
            m = re.search(r'\s(offen|idxen|offset|offset0|offset1|lds|sc0|sc1|nt|quad_perm|row_|wave_|op_sel|neg_|dst_sel|src0_sel|src1_sel|dst_unused|clamp|mul:|div:|bitop3|bound_ctrl|bank_mask|cbsz|abid|blgp|glc)', ' ' + joined)
            if m:
                pos = m.start()
                mods = (' ' + joined)[pos:].strip()
                joined = (' ' + joined)[:pos].strip()
            ops = [x.strip() for x in joined.split(',')] if joined else []
        R = [regs_of(x) for x in ops]
        rd = set(); wr = set()
        k = None
        def allsrc(lst):
            for r in lst: rd.update(r)
        if op.startswith('v_mfma'):
            k = 'mfma'; wr.update(R[0]); allsrc(R[1:])
            self.srcc = set(R[3]); self.srcab = set(R[1]) | set(R[2])
            self.passes = 8 if '32x32x16' in op else (4 if '16x16x32' in op else 16)
        elif op.startswith('v_cmpx'):
            k = 'valu'; wr.update(R[0]); wr.add(('exec', 0)); allsrc(R[1:])
        elif op.startswith('v_cmp'):
            k = 'valu'; wr.update(R[0]); allsrc(R[1:])
        elif op.startswith('v_permlane') and 'swap' in op:
            k = 'valu'; wr.update(R[0]); wr.update(R[1]); allsrc(R)
        elif op.startswith('v_add_co') or op.startswith('v_sub_co') or op.startswith('v_addc_co') or op.startswith('v_subrev_co'):
            k = 'valu'; wr.update(R[0]); wr.update(R[1]); allsrc(R[2:])
        elif op.startswith('v_'):
            k = 'valu'; wr.update(R[0]); allsrc(R[1:])
            if op.startswith(('v_fmac', 'v_dot2c', 'v_writelane', 'v_pk_fmac')): rd.update(R[0])
            if op.startswith('v_dot2'): self.dotab = set(R[1]) | set(R[2])
            if 'quad_perm' in mods or 'row_' in mods or 'wave_' in mods:
                self.dpp = True; rd.update(R[0])
            if op in TRANS or op.replace('_e32', '').replace('_e64', '') in TRANS: k = 'trans'
        elif op.startswith('ds_read') or op.startswith('ds_bpermute') or op.startswith('ds_swizzle') or op.startswith('ds_permute'):
            k = 'ds'; wr.update(R[0]); allsrc(R[1:])
        elif op.startswith('ds_write') or op.startswith('ds_add') or op.startswith('ds_max') or op.startswith('ds_or'):
            k = 'ds'; allsrc(R)
            self.storedata = set().union(*R[1:]) if len(R) > 1 else set()
        elif op.startswith('buffer_load') or op.startswith('global_load'):
            k = 'vm'
            if ' lds' in ' ' + mods or op.startswith('global_load_lds'):
                allsrc(R); rd.add(('m0', 0))
            else:
                wr.update(R[0]); allsrc(R[1:])
        elif op.startswith('buffer_store') or op.startswith('global_store'):
            k = 'vm'; allsrc(R)
            d = R[0] if op.startswith('buffer') else R[1]
            if 'x3' in op or 'x4' in op: self.storedata = set(d)
        elif op.startswith('buffer_atomic'):
            k = 'vm'; allsrc(R)
            if 'sc0' in mods: wr.update(R[0])
        elif op.startswith('global_atomic'):
            k = 'vm'
            if 'sc0' in mods: wr.update(R[0]); allsrc(R[1:])
            else: allsrc(R)
        elif op.startswith('buffer_wbl2') or op.startswith('buffer_inv'):
            k = 'vm'
        elif op.startswith('s_load') or op.startswith('s_buffer_load'):
            k = 'smem'; wr.update(R[0]); allsrc(R[1:])
        elif op in ('s_memtime', 's_memrealtime'):
            k = 'smem'; wr.update(R[0])
        elif op == 's_waitcnt':
            k = 'wait'
            m = re.search(r'vmcnt\((\d+)\)', t); self.wvm = int(m.group(1)) if m else None
            m = re.search(r'lgkmcnt\((\d+)\)', t); self.wlg = int(m.group(1)) if m else None
        elif op == 's_barrier':
            k = 'barrier'
        elif op == 's_nop':
            k = 'nop'; self.states = int(ops[0], 0) + 1
        elif op.startswith('s_cbranch') or op == 's_branch' or op == 's_endpgm' or op == 's_setprio' or op == 's_sleep':
            k = 'ctl'
            if 'vcc' in op: rd.add(('vcc', 0))
            if 'exec' in op: rd.add(('exec', 0))
            if 'scc' in op: rd.add(('scc', 0))
        elif op.startswith('s_cmp') or op.startswith('s_bitcmp'):
            k = 'salu'; allsrc(R); wr.add(('scc', 0))
        elif op.startswith('s_getreg') or op.startswith('s_getpc'):
            k = 'salu'; wr.update(R[0])
        elif op.startswith('s_'):
            k = 'salu'; wr.update(R[0]); allsrc(R[1:])
            if 'saveexec' in op: rd.add(('exec', 0)); wr.add(('exec', 0))
            if op.startswith(('s_cselect', 's_addc', 's_subb')): rd.add(('scc', 0))
            if op.startswith(('s_addk', 's_mulk')): rd.update(R[0])
            if not op.startswith(('s_mov', 's_movk', 's_cselect', 's_mul', 's_not', 's_brev', 's_sext', 's_bfm')): wr.add(('scc', 0))
        else:
            raise ValueError('unknown op: ' + self.txt)
        rd.update(extra_rd); wr.update(extra_wr)
        if k in ('valu', 'trans', 'mfma', 'ds', 'vm'): rd.add(('exec', 0))
        self.kind = k; self.rd = rd; self.wr = wr
    def __repr__(self): return self.txt

class Prog:
    def __init__(self):
        self.segs = []
        self.cur = None
        self.lin()
    def lin(self):
        self.cur = []; self.segs.append([self.cur, 1]); return self
    def loop(self, trips):
        self.cur = []; self.segs.append([self.cur, trips]); return self
    def e(self, txt, **kw):
        for line in txt.split('\n'):
            line = line.strip()
            if not line: continue
            self.cur.append(Ins(line, **kw))
        return self
    def add(self, ins):
        self.cur.append(ins); return self
    def trace(self, maxtrips=None):
        for seg, trips in self.segs:
            n = trips if maxtrips is None else min(trips, maxtrips)
            for it in range(n):
                for i in seg: yield i
    def autowait(self):
        req = {}
        def sim(static, record):
            vmq = []; lgq = []
            bad = 0
            for i in self.trace():
                if i.kind == 'label': continue
                if static and id(i) in req:
                    v, l = req[id(i)]
                    if v is not None: vmq = vmq[len(vmq) - v:] if v < len(vmq) else vmq
                    if l is not None: lgq = lgq[len(lgq) - l:] if l < len(lgq) else lgq
                if i.kind == 'wait':
                    if i.wvm is not None and i.wvm < len(vmq): vmq = vmq[len(vmq) - i.wvm:] if i.wvm > 0 else []
                    if i.wlg is not None and i.wlg < len(lgq): lgq = lgq[len(lgq) - i.wlg:] if i.wlg > 0 else []
                    continue
                touch = i.rd | i.wr
                nv = None; nl = None
                for idx, en in enumerate(vmq):
                    if (en['wr'] & touch) or (en['ldswr'] & i.ldsrd) or (en['ldswr'] & i.ldswr and False):
                        c = len(vmq) - 1 - idx
                        nv = c if nv is None else min(nv, c)
                for idx, en in enumerate(lgq):
                    hit = (en['wr'] & touch) or (en['ldsrd'] & i.ldswr) or (en['ldswr'] & i.ldsrd and i.kind in ('barrier',))
                    if hit:
                        c = len(lgq) - 1 - idx
                        if any(x['smem'] for x in lgq): c = 0
                        nl = c if nl is None else min(nl, c)
                if nv is not None or nl is not None:
                    if nv is not None and nv > 63: raise ValueError('vmcnt>63 at ' + i.txt)
                    if nl is not None and nl > 15: nl = 15
                    if record:
                        r = req.setdefault(id(i), [None, None])
                        if nv is not None: r[0] = nv if r[0] is None else min(r[0], nv)
                        if nl is not None: r[1] = nl if r[1] is None else min(r[1], nl)
                    else:
                        bad += 1; print('UNCOVERED wait at', i.txt, nv, nl)
                    if nv is not None: vmq = vmq[len(vmq) - nv:] if nv > 0 else []
                    if nl is not None: lgq = lgq[len(lgq) - nl:] if nl > 0 else []
                if i.kind == 'vm':
                    vmq.append(dict(wr=set(i.wr), ldswr=set(i.ldswr), ldsrd=set(), smem=False))
                    if len(vmq) > 63: vmq = vmq[-63:]
                elif i.kind == 'ds':
                    lgq.append(dict(wr=set(i.wr), ldswr=set(i.ldswr), ldsrd=set(i.ldsrd), smem=False))
                elif i.kind == 'smem':
                    lgq.append(dict(wr=set(i.wr), ldswr=set(), ldsrd=set(), smem=True))
            return bad
        sim(False, True)
        bad = sim(True, False)
        assert bad == 0
        for seg in self.segs:
            out = []
            for i in seg[0]:
                if id(i) in req:
                    v, l = req[id(i)]
                    s = 's_waitcnt'
                    if v is not None: s += f' vmcnt({v})'
                    if l is not None: s += f' lgkmcnt({l})'
                    out.append(Ins(s, note='auto'))
                out.append(i)
            seg[0][:] = out
        return self
    def hazards(self, fix=False):
        problems = []
        hist = []
        def dist_needed(p, c):
            need = 0
            pw = p.wr;
            if p.kind in ('valu', 'trans'):
                vw = {r for r in pw if r[0] in ('v', 'a')}
                sw = {r for r in pw if r[0] in ('s', 'vcc')}
                if c.kind == 'mfma' and (vw & c.rd): need = max(need, 2)
                if c.kind == 'mfma' and ('exec', 0) in pw: need = max(need, 4)
                if c.dpp and (vw & c.rd): need = max(need, 2)
                if c.dpp and ('exec', 0) in pw: need = max(need, 5)
                if c.op.startswith('v_permlane') and (vw & c.rd): need = max(need, 2)
                if c.op.startswith(('v_readlane', 'v_readfirstlane')) and (vw & c.rd): need = max(need, 1)
                if c.kind == 'vm' and (sw & c.rd): need = max(need, 5)
                if c.kind in ('valu', 'trans') and (sw & c.rd): need = max(need, 2)
                if c.op.startswith(('v_readlane', 'v_writelane')) and (sw & c.rd): need = max(need, 4)
                if p.kind == 'trans' and c.kind in ('valu', 'mfma', 'trans') and (vw & c.rd): need = max(need, 1)
                if ('exec', 0) in pw and c.op.startswith(('v_readlane', 'v_readfirstlane', 'v_writelane', 'v_permlane')): need = max(need, 4)
                if 'sdwa' in p.op and (vw & (c.rd | c.wr)) and c.kind in ('valu', 'trans'): need = max(need, 0)
            if p.op.startswith('v_dot2'):
                vw = {r for r in pw if r[0] in ('v', 'a')}
                if vw & (c.rd | c.wr):
                    if c.op == p.op and not (vw & (c.dotab)): pass
                    else: need = max(need, 3)
            if p.kind == 'mfma':
                P = p.passes
                D = pw - {('exec', 0)}
                tbl_ab = {2: 5, 4: 8, 8: 12, 16: 20}[P]
                tbl_c = {2: 4, 4: 6, 8: 10, 16: 18}[P]
                tbl_war = {2: 1, 4: 3, 8: 7, 16: 15}[P]
                if c.kind == 'mfma':
                    if D & c.srcab: need = max(need, tbl_ab)
                    if D & c.srcc:
                        if D == c.srcc and c.passes == P: pass
                        else: need = max(need, tbl_c)
                    if (D & c.wr) and not (D & c.srcc): need = max(need, tbl_c)
                elif c.kind in ('valu', 'trans', 'vm', 'ds'):
                    if D & (c.rd | c.wr): need = max(need, tbl_ab)
                    if c.kind in ('valu', 'trans') and (p.srcc & c.wr): need = max(need, tbl_war)
            if p.kind == 'salu' and ('m0', 0) in pw and c.kind == 'vm' and ('m0', 0) in c.rd: need = max(need, 1)
            if p.storedata and c.kind in ('valu', 'trans') and (p.storedata & c.wr) and p.kind == 'vm': need = max(need, 2)
            if p.storedata and p.kind == 'vm' and c.kind in ('vm', 'ds', 'mfma') and (p.storedata & c.wr): need = max(need, 1)
            return need
        planned = {}
        for i in self.trace(maxtrips=3):
            if i.kind == 'label': continue
            d = planned.get(id(i), 0)
            worst = 0
            for p in reversed(hist[-24:]):
                if isinstance(p, int):
                    d += p; continue
                n = dist_needed(p, i)
                if n > d:
                    worst = max(worst, n - d)
                    problems.append((p, i, n, d))
                d += p.states
                if d >= 21: break
            if worst > 0:
                planned[id(i)] = planned.get(id(i), 0) + worst
            if id(i) in planned: hist.append(planned[id(i)])
            hist.append(i)
        if fix and planned:
            for seg in self.segs:
                out = []
                for x in seg[0]:
                    if id(x) in planned:
                        n = planned[id(x)]
                        while n > 0:
                            k = min(n, 16)
                            out.append(Ins(f's_nop {k - 1}', note='hazard')); n -= k
                    out.append(x)
                seg[0][:] = out
        return problems
    def fix_hazards(self, verbose=False):
        r = self.hazards(fix=True)
        if verbose:
            for p, c, n, d in r: print('hazard fixed:', p.txt, '->', c.txt, n, d)
        r2 = self.hazards(fix=False)
        assert not r2, r2
        return self
    def text(self):
        out = []
        for seg, trips in self.segs:
            for i in seg:
                if i.kind == 'label': out.append(i.txt)
                else: out.append('    ' + i.txt)
        return '\n'.join(out) + '\n'
```

```python
from asmgen import *

def attn(p, cfg):
    from gen import (KB, VB, KSLOT, VSLOT, OTB, XNB, SCR, TSTR, WS_PART, WS_YACC, WS_KEY, S_W, S_X, S_K, S_V, S_WS, S_WG, S_WU, S_WD, S_DBG, S_WO,
        sG, sRB, sW, sR0, sPh, sPL, sPH, sGo, sGs, sCnt, sTrig, sMaskHi, sKg, sVg, sKm, sVm, sKd, sVd, sKmB, sVmB, sRetry,
        sT0, sT1, sT2, sT3, sT4, sT5, sIdx, sFF, sC, vLane, vKa0, vKa1, vVa, vKd, vVd, vB, vL, vT, vF, vGo, vP, vRAW, vNEG, vACC, vQ, vS, aB, aO,
        gemm, gemm_funcs, stamp, dump_regs, dump_tile, aDUM)
    vVd2 = 15
    aFG = 192
    aFD = 208
    aXR = 216
    aMF = 221
    aKEY = 224
    NR = 4
    def dmaK(e, tag):
        out = []
        if e == 0: out.append(Ins(f"s_add_u32 m0, s{sKmB}, s{sKm}"))
        else: out.append(Ins(f"s_add_u32 m0, m0, 16"))
        out.append(Ins(f"buffer_load_dwordx4 v{vKd}, s[{S_K}:{S_K+3}], s{sKg} offen" + (" offset:1024" if e else "") + " lds", ldswr=[tag]))
        return out
    def dmaV(e, tag):
        out = []
        if e == 0: out.append(Ins(f"s_add_u32 m0, s{sVmB}, s{sVm}"))
        else: out.append(Ins(f"s_add_u32 m0, m0, 1024"))
        out.append(Ins(f"buffer_load_dwordx4 v{vVd2 if e else vVd}, s[{S_V}:{S_V+3}], s{sKg} offen lds", ldswr=[tag]))
        return out
    def advK(): return [Ins(f"s_add_u32 s{sKm}, s{sKm}, {KSLOT}"), Ins(f"s_cmp_eq_u32 s{sKm}, {4*KSLOT}"), Ins(f"s_cselect_b32 s{sKm}, 0, s{sKm}")]
    def advV(): return [Ins(f"s_add_u32 s{sVm}, s{sVm}, {VSLOT}"), Ins(f"s_cmp_eq_u32 s{sVm}, {4*VSLOT}"), Ins(f"s_cselect_b32 s{sVm}, 0, s{sVm}")]
    def advG(): return [Ins(f"s_add_u32 s{sKg}, s{sKg}, 8192")]
    p.e(f"""
    v_lshrrev_b32 v10, 4, v{vLane}            ; rho
    v_and_b32 v11, 15, v{vLane}
    v_lshlrev_b32 v12, 2, v10
    v_xor_b32 v12, v11, v12
    v_lshlrev_b32 v12, 4, v12
    s_lshl_b32 s{sT0}, s{sW}, 3
    v_add_u32 v13, s{sT0}, v10                ; 8w + rho
    v_lshlrev_b32 v13, 8, v13
    v_add_u32 v{vKd}, v12, v13
    v_lshlrev_b32 v12, 2, v10                 ; 4 rho
    v_add_u32 v12, s{sW}, v12                 ; + w
    v_lshlrev_b32 v12, 8, v12
    v_lshlrev_b32 v13, 4, v11
    v_add_u32 v{vVd}, v12, v13
    v_add_u32 v{vVd2}, 4096, v{vVd}
    s_mul_i32 s{sKmB}, s{sW}, {2*1040}
    s_add_u32 s{sKmB}, s{sKmB}, {KB}
    s_mul_i32 s{sVmB}, s{sW}, {2*1024 + 64}
    s_add_u32 s{sVmB}, s{sVmB}, {VB}
    """)
    p.e(f"""
    s_sub_u32 s{S_V}, s{S_V}, 16384
    s_subb_u32 s{S_V+1}, s{S_V+1}, 0
    s_and_b32 s{S_V+1}, s{S_V+1}, 0xffff
    s_mov_b32 s{S_V+2}, {131072 + 16384}
    s_mov_b32 s{S_V+3}, 0x20000
    s_mov_b32 s{sRetry}, 0
    v_mov_b32 v10, 0xff800000
    v_accvgpr_write_b32 a{aMF}, v10
    v_accvgpr_write_b32 a{aMF+1}, v10
    """)
    def initial_dma():
        p.e(f"s_mov_b32 s{sKg}, 0")
        p.e(f"s_mov_b32 s{sKm}, 0")
        p.e(f"s_mov_b32 s{sVm}, 0")
        for t in range(4):
            for e in range(2):
                for i in dmaK(e, 'P'): p.add(i)
            p.e(f"s_add_u32 s{sKm}, s{sKm}, {KSLOT}")
            p.e(f"s_add_u32 s{sKg}, s{sKg}, 8192")
            if t in (1, 2):
                for e in range(2):
                    for i in dmaV(e, 'P'): p.add(i)
                p.e(f"s_add_u32 s{sVm}, s{sVm}, {VSLOT}")
        p.e(f"s_mov_b32 s{sKm}, 0")
    initial_dma()
    p.e(f"v_mov_b32 v10, 0")
    p.e(f"buffer_load_dwordx2 a[{aKEY}:{aKEY+1}], v10, s[{S_DBG}:{S_DBG+3}], 0 offen sc0 sc1")
    import math
    c = math.log2(math.e) / math.sqrt(128.0)
    import struct
    cb_ = struct.unpack('<I', struct.pack('<f', c))[0]
    p.e(f"s_mov_b32 s{sC}, {hex(cb_)}")
    p.e(f"s_mov_b32 s{sC+1}, {hex(cb_)}")
    for k in range(64): p.e(f"v_pk_mul_f32 v[{vACC+2*k}:{vACC+2*k+1}], v[{vACC+2*k}:{vACC+2*k+1}], s[{sC}:{sC+1}]")
    def accr(j, cb, r): return vACC + 16*j + 4*cb + r
    def fin(CB, u, q): return vQ + 32*CB + 4*u + q
    def tmp(CB, u, q): return vRAW + (CB*8 + u)*2 + q
    for cb in range(4):
        for r in range(4):
            for q in range(2):
                p.e(f"v_cvt_pk_bf16_f32 v{tmp(cb//2, r + 4*(cb%2), q)}, v{accr(2*q, cb, r)}, v{accr(2*q+1, cb, r)}")
    for cb in range(4):
        for r in range(4):
            for q in range(2, 4):
                p.e(f"v_cvt_pk_bf16_f32 v{fin(cb//2, r + 4*(cb%2), q)}, v{accr(2*q, cb, r)}, v{accr(2*q+1, cb, r)}")
    for CB in range(2):
        for u in range(8):
            for q in range(2): p.e(f"v_mov_b32 v{fin(CB, u, q)}, v{tmp(CB, u, q)}")
    for CB in range(2):
        for r in range(4):
            for q in range(4): p.e(f"v_permlane16_swap_b32 v{fin(CB, r, q)}, v{fin(CB, r+4, q)}")
    if cfg.stop == 'q':
        dump_regs(p, 'v', vQ, 64); return
    p.e(f"""
    v_and_b32 v10, 15, v{vLane}
    v_lshrrev_b32 v11, 4, v{vLane}
    v_lshlrev_b32 v10, 4, v10                 ; i*16
    v_lshlrev_b32 v11, 13, v11                ; kq*8*1024
    v_add_u32 v10, v10, v11
    s_lshl_b32 s{sT0}, s{sW}, 8
    v_add_u32 v10, s{sT0}, v10
    v_add_u32 v11, 4096, v10
    s_mov_b32 s{sT1}, {32*1024}
    """)
    for s in range(2):
        for r in range(8):
            b = vRAW + 32*s + 4*r
            so = '0' if s == 0 else f"s{sT1}"
            p.e(f"buffer_load_dwordx4 v[{b}:{b+3}], v{10 + r//4}, s[{S_WO}:{S_WO+3}], {so} offen offset:{(r % 4)*1024}")
    p.e(f"""
    s_mov_b32 s{sT3}, 0
    L_poll:
    v_accvgpr_read_b32 v12, a{aKEY}
    v_accvgpr_read_b32 v13, a{aKEY+1}
    s_nop 0
    v_readfirstlane_b32 s{sT0}, v12
    v_readfirstlane_b32 s{sT1}, v13
    s_nop 3
    s_cmp_ge_u32 s{sT1}, 256
    s_cbranch_scc1 L_polled
    s_add_u32 s{sT3}, s{sT3}, 1
    s_cmp_ge_u32 s{sT3}, 0x40000
    s_cbranch_scc1 L_polled
    v_mov_b32 v12, 0
    s_sleep 2
    """)
    i = Ins(f"buffer_load_dwordx2 a[{aKEY}:{aKEY+1}], v12, s[{S_DBG}:{S_DBG+3}], 0 offen sc0 sc1"); i.kind = 'ctl'; p.add(i)
    p.e(f"""
    s_waitcnt vmcnt(0)
    s_branch L_poll
    L_polled:
    s_and_b32 s{sIdx}, s{sT0}, 0xffff
    s_sub_u32 s{sIdx}, 0xffff, s{sIdx}
    s_and_b32 s{sIdx}, s{sIdx}, 0x7ff
    """)
    p.e(f"""
    s_or_b32 s{sT4}, s2, s{sW}
    s_cmp_eq_u32 s{sT4}, 0
    s_cbranch_scc0 L_nokey
    v_mov_b32 v12, s{sT0}
    v_mov_b32 v13, {WS_KEY}
    s_mov_b64 exec, 1
    """)
    i = Ins(f"buffer_store_dword v12, v13, s[{S_WS}:{S_WS+3}], 0 offen"); i.kind = 'ctl'; p.add(i)
    p.e("s_mov_b64 exec, -1")
    p.e("L_nokey:")
    p.e(f"""
    s_mul_i32 s{sFF}, s{sG}, 28
    s_add_u32 s{sFF}, s{sFF}, s{sRB}
    s_cmp_lt_u32 s{sRB}, 28
    s_cbranch_scc0 L_noffl
    s_lshl_b32 s{sT1}, s{sIdx}, 10
    v_lshlrev_b32 v12, 4, v{vLane}
    v_lshlrev_b32 v13, 2, v0                  ; t*4
    v_mul_u32_u24 v14, {2*3584}, v0           ; row 2t
    s_lshl_b32 s{sT2}, s{sFF}, 4
    v_add_u32 v14, s{sT2}, v14
    s_lshl_b32 s{sT4}, s{sFF}, 13
    s_add_u32 s{sT5}, s{sT4}, 4096
    """)
    def cond(txt):
        i = Ins(txt); i.kind = 'ctl'; p.add(i)
    cond(f"buffer_load_dwordx4 a[{aXR}:{aXR+3}], v12, s[{S_X}:{S_X+3}], s{sT1} offen")
    cond(f"buffer_load_dword a{aXR+4}, v13, s[{S_X}:{S_X+3}], s{sT1} offen")
    cond(f"buffer_load_dwordx4 a[{aFG}:{aFG+3}], v14, s[{S_WG}:{S_WG+3}], 0 offen")
    cond(f"buffer_load_dwordx4 a[{aFG+4}:{aFG+7}], v14, s[{S_WG}:{S_WG+3}], 0 offen offset:3584")
    cond(f"buffer_load_dwordx4 a[{aFG+8}:{aFG+11}], v14, s[{S_WU}:{S_WU+3}], 0 offen")
    cond(f"buffer_load_dwordx4 a[{aFG+12}:{aFG+15}], v14, s[{S_WU}:{S_WU+3}], 0 offen offset:3584")
    for e in range(8):
        cond(f"buffer_load_dword a{aFD+e}, v13, s[{S_WD}:{S_WD+3}], s{sT4 if e < 4 else sT5} offen offset:{(e % 4)*1024}")
    p.e("L_noffl:")
    p.e(f"""
    L_attn:
    v_and_b32 v10, 31, v{vLane}               ; key
    v_lshrrev_b32 v11, 5, v{vLane}            ; hh
    v_lshrrev_b32 v12, 2, v10                 ; i
    v_mul_u32_u24 v12, 1040, v12
    v_and_b32 v13, 3, v10                     ; rho
    v_lshlrev_b32 v14, 8, v13
    v_add_u32 v12, v12, v14
    v_lshlrev_b32 v14, 1, v11                 ; 2hh
    v_xor_b32 v10, v14, v13
    v_lshlrev_b32 v10, 6, v10
    v_add_u32 v{vKa0}, v12, v10
    v_or_b32 v14, 1, v14
    v_xor_b32 v10, v14, v13
    v_lshlrev_b32 v10, 6, v10
    v_add_u32 v{vKa1}, v12, v10
    v_and_b32 v10, 15, v{vLane}
    v_lshrrev_b32 v10, 2, v10                 ; r
    v_mul_u32_u24 v10, 2112, v10
    v_lshlrev_b32 v12, 8, v11                 ; hh*256
    v_add_u32 v10, v10, v12
    v_bfe_u32 v12, v{vLane}, 4, 1             ; G
    v_lshlrev_b32 v12, 1, v12
    v_and_b32 v13, 1, v{vLane}
    v_add_u32 v12, v12, v13                   ; 2G + (c&1)
    v_lshlrev_b32 v12, 4, v12
    v_add_u32 v10, v10, v12
    v_bfe_u32 v12, v{vLane}, 1, 1             ; c>>1
    v_lshlrev_b32 v12, 3, v12
    v_add_u32 v10, v10, v12
    v_add_u32 v{vVa}, {VB}, v10
    v_mov_b32 v{vL}, 0
    v_mov_b32 v{vL+1}, 0
    s_mov_b32 s{sKd}, {-2*KSLOT & 0xffffffff}
    s_mov_b32 s{sVd}, {2*VSLOT}
    """)
    assert KB == 0
    def Sreg(buf, CB, r): return vS + 32*buf + 16*CB + r
    def rdK(F, u, off):
        a = aB + 4*(F % NR)
        return [Ins(f"ds_read_b128 a[{a}:{a+3}], v{vKa0 + (u >> 2)} offset:{off + (u & 3)*16}")]
    def rdV(F, f, off):
        a = aB + 4*(F % NR); v = f >> 2; dt = f & 3
        return [Ins(f"ds_read_b64_tr_b16 a[{a}:{a+1}], v{vVa} offset:{off + v*1024 + dt*64}"),
                Ins(f"ds_read_b64_tr_b16 a[{a+2}:{a+3}], v{vVa} offset:{off + v*1024 + 512 + dt*64}")]
    def mfK(F, u, CB, buf, czero=False):
        a = aB + 4*(F % NR); s = Sreg(buf, CB, 0); q = vQ + 32*CB + 4*u
        if u == 0: c = '0' if czero else f"v[{vNEG+16*CB}:{vNEG+16*CB+15}]"
        else: c = f"v[{s}:{s+15}]"
        return Ins(f"v_mfma_f32_32x32x16_bf16 v[{s}:{s+15}], a[{a}:{a+3}], v[{q}:{q+3}], {c}")
    def mfV(F, f, CB):
        a = aB + 4*(F % NR); v = f >> 2; dt = f & 3
        o = aO + 64*CB + 16*dt; pp = vP + 8*CB + 4*v
        return Ins(f"v_mfma_f32_32x32x16_bf16 a[{o}:{o+15}], a[{a}:{a+3}], v[{pp}:{pp+3}], a[{o}:{o+15}]")
    def el(k):
        return ((k >> 3) & 1, (k & 7) + 8*(k >> 4))
    def opE(buf, k):
        CB, r = el(k); s = Sreg(buf, CB, r); return Ins(f"v_exp_f32 v{s}, v{s}")
    def opA(buf, k):
        CB, r = el(k); s = Sreg(buf, CB, r); return Ins(f"v_add_f32 v{vL+CB}, v{vL+CB}, v{s}")
    def opC(buf, k):
        CB, r = el(k); s = Sreg(buf, CB, r)
        pp = vP + 8*CB + 4*(r >> 3) + ((r & 7) >> 1)
        return Ins(f"v_cvt_pk_bf16_f32 v{pp}, v{s}, v{s+1}")
    def sched_sm(buf, ngaps, e_gap, c_min):
        g = {i: [] for i in range(ngaps + 8)}
        for k in range(32):
            g[e_gap(k)].append(('E', opE(buf, k)))
        nextc = 0
        for k in range(32):
            g[e_gap(k) + 1].append(('A', opA(buf, k)))
        for k in range(0, 32, 2):
            gg = max(e_gap(k + 1) + 1, c_min(k), nextc)
            g[gg].append(('C', opC(buf, k))); nextc = gg + (1 if c_min(k) >= e_gap(k+1) + 1 else 0)
        return g
    def block(mfmas, reads, sm, extra):
        for gi, m in enumerate(mfmas):
            p.add(m)
            for i in reads.get(gi, []): p.add(i)
            ops = sm.get(gi, [])
            for kind in ('A', 'C', 'E'):
                for kk, i in ops:
                    if kk == kind: p.add(i)
            for i in extra.get(gi, []): p.add(i)
        for gi in sorted(sm):
            if gi >= len(mfmas):
                for kind in ('A', 'C', 'E'):
                    for kk, i in sm[gi]:
                        if kk == kind: p.add(i)
    def barrier(tag): return [Ins("s_barrier", ldsrd=[tag])]
    def dma_ops(tag, g0):
        d = {}
        seq = [dmaK(0, tag), dmaK(1, tag), dmaV(0, tag), dmaV(1, tag)]
        for n, s in enumerate(seq): d[g0 + 2*n] = list(s)
        d[g0 + 1] = advK()
        d[g0 + 7] = advV() + advG()
        return d
    p.add(Ins("s_barrier", ldsrd=['P']))
    stamp(p, cfg, 3)
    for F in range(3):
        for i in rdK(F, F, 0): p.add(i)
    mf_ = []; rd = {}
    for u in range(8):
        for CB in range(2): mf_.append(mfK(u, u, CB, 0, czero=True))
        F = u + 3
        rd[2*u] = rdK(F, F, 0) if F < 8 else rdK(F, F - 8, KSLOT)
    block(mf_, rd, {}, {})
    for CB in range(2):
        m = vT + CB; t = vT + 2 + CB
        s = Sreg(0, CB, 0)
        p.e(f"v_max3_f32 v{m}, v{s}, v{s+1}, v{s+2}")
        for r in range(3, 15, 2): p.e(f"v_max3_f32 v{m}, v{m}, v{s+r}, v{s+r+1}")
        p.e(f"v_accvgpr_read_b32 v{t}, a{aMF+CB}")
        p.e(f"v_max3_f32 v{m}, v{m}, v{s+15}, v{t}")
        p.e(f"v_mov_b32 v{t}, v{m}")
    for CB in range(2):
        m = vT + CB; t = vT + 2 + CB
        p.e(f"v_permlane32_swap_b32 v{m}, v{t}")
        p.e(f"v_max_f32 v{m}, v{m}, v{t}")
        p.e(f"v_sub_f32 v{vNEG+16*CB}, 0, v{m}")
        p.e(f"v_sub_f32 v{vNEG+16*CB+1}, 0, v{m}")
    for CB in range(2):
        n = vNEG + 16*CB
        for r in range(2, 16, 2): p.e(f"v_mov_b64 v[{n+r}:{n+r+1}], v[{n}:{n+1}]")
        s = Sreg(0, CB, 0)
        for r in range(0, 16, 2): p.e(f"v_pk_add_f32 v[{s+r}:{s+r+1}], v[{s+r}:{s+r+1}], v[{n}:{n+1}]")
    mf_ = []; rd = {}
    for u in range(8):
        for CB in range(2): mf_.append(mfK(8 + u, u, CB, 1))
        F = 8 + u + 3
        rd[2*u] = rdK(F, u + 3, KSLOT) if u + 3 < 8 else rdV(F, u + 3 - 8, 0)
    sm = sched_sm(0, 16, lambda k: k // 2, lambda k: 0)
    ex = {}
    ex[1] = barrier('none')
    for g_, l_ in dma_ops('D0', 2).items(): ex.setdefault(g_, []).extend(l_)
    ex.setdefault(15, []).extend([Ins(f"v_add_u32 v{vKa0}, {2*KSLOT}, v{vKa0}"), Ins(f"v_add_u32 v{vKa1}, {2*KSLOT}, v{vKa1}"), Ins(f"s_mov_b32 s{sCnt}, 0")])
    block(mf_, rd, sm, ex)
    def full_iter(par):
        voff = ((par + 1) % 2) * VSLOT
        koff = ((par + 1) % 2) * KSLOT
        vnext = par * VSLOT
        mf_ = []; rd = {}; ex = {}
        for f in range(8):
            for CB in range(2): mf_.append(mfV(f, f, CB))
        for u in range(8):
            for CB in range(2): mf_.append(mfK(8 + u, u, CB, (par + 1) % 2))
        for f in range(16):
            F = f + 3
            if F < 8: r_ = rdV(F, F, voff)
            elif F < 16: r_ = rdK(F, F - 8, koff)
            else: r_ = rdV(F, F - 16, vnext)
            if len(r_) == 2: rd[2*f] = [r_[0]]; rd[2*f + 1] = [r_[1]]
            else: rd[2*f] = r_
        ex[9] = barrier(f"D{par}")
        for g_, l_ in dma_ops(f"D{par}", 10).items(): ex.setdefault(g_, []).extend(l_)
        if par == 0:
            ex.setdefault(25, []).extend([Ins(f"v_add_u32 v{vKa0}, s{sKd}, v{vKa0}"), Ins(f"v_add_u32 v{vKa1}, s{sKd}, v{vKa1}"),
                                          Ins(f"v_add_u32 v{vVa}, s{sVd}, v{vVa}"), Ins(f"s_sub_u32 s{sKd}, 0, s{sKd}"), Ins(f"s_sub_u32 s{sVd}, 0, s{sVd}")])
            ex.setdefault(29, []).append(Ins(f"s_add_u32 s{sCnt}, s{sCnt}, 1"))
            ex.setdefault(31, []).append(Ins(f"s_cmp_lt_u32 s{sCnt}, 7"))
        sm = sched_sm(par, 32, lambda k: 2 + (k*28)//31, lambda k: 7 if k < 16 else 15)
        block(mf_, rd, sm, ex)
    p.loop(7)
    p.e("L_al:")
    full_iter(1)
    full_iter(0)
    p.e("s_cbranch_scc1 L_al")
    p.lin()
    mf_ = []; rd = {}; ex = {}
    for h in range(2):
        for f in range(8):
            for CB in range(2): mf_.append(mfV(8*h + f, f, CB))
    for f in range(16):
        F = f + 3
        if F < 8: r_ = rdV(F, F, 0)
        elif F < 16: r_ = rdV(F, F - 8, VSLOT)
        else: continue
        rd[2*f] = [r_[0]]; rd[2*f + 1] = [r_[1]]
    ex[9] = barrier("D1")
    sm = sched_sm(1, 32, lambda k: (2 + (k*11)//15) if k < 16 else (10 + ((k - 16)*11)//15), lambda k: 7 if k < 16 else 15)
    block(mf_, rd, sm, ex)
    stamp(p, cfg, 4)
    p.e(f"""
    v_mov_b32 v10, v{vL}
    v_mov_b32 v11, v{vL+1}
    s_mov_b32 s{sT0}, 0x5d800000              ; 2^60
    v_permlane32_swap_b32 v{vL}, v10
    v_permlane32_swap_b32 v{vL+1}, v11
    v_add_f32 v{vL}, v{vL}, v10
    v_add_f32 v{vL+1}, v{vL+1}, v11
    v_max_f32 v10, v{vL}, v{vL+1}
    v_add_f32 v11, v{vL}, v{vL+1}
    v_cmp_nle_f32 vcc, v11, s{sT0}
    v_rcp_f32 v12, v{vL}
    v_rcp_f32 v14, v{vL+1}
    s_cmp_lg_u64 vcc, 0
    s_cselect_b32 s{sT1}, 1, 0
    v_mov_b32 v10, s{sT1}
    s_lshl_b32 s{sT2}, s{sW}, 2
    s_add_u32 s{sT2}, s{sT2}, {SCR}
    v_mov_b32 v11, s{sT2}
    """)
    p.add(Ins("ds_write_b32 v11, v10", ldswr=['flag']))
    p.e("s_waitcnt vmcnt(0)")
    p.add(Ins("s_barrier", ldsrd=['flag']))
    p.e(f"v_mov_b32 v11, {SCR}")
    p.e(f"ds_read_b128 v[{vP}:{vP+3}], v11")
    if cfg.stop == 'o':
        dump_regs(p, 'a', aO, 128); return
    TMP = vS
    def norm_rd(ti):
        CB, dt = ti // 4, ti % 4
        o = aO + 64*CB + 16*dt
        t = TMP + 16*(ti % 4)
        for r in range(16): p.e(f"v_accvgpr_read_b32 v{t+r}, a{o+r}")
        rr = 12 + 2*CB
        for r in range(0, 16, 2): p.e(f"v_pk_mul_f32 v[{t+r}:{t+r+1}], v[{t+r}:{t+r+1}], v[{rr}:{rr+1}] op_sel_hi:[1,0]")
    def norm_cv(ti):
        t = TMP + 16*(ti % 4)
        d = vQ + ti*8
        for r in range(0, 16, 2): p.e(f"v_cvt_pk_bf16_f32 v{d + r//2}, v{t+r}, v{t+r+1}")
    for ti in range(4): norm_rd(ti)
    p.e(f"""
    v_or_b32 v10, v{vP}, v{vP+1}
    v_or3_b32 v10, v10, v{vP+2}, v{vP+3}
    s_nop 0
    v_readfirstlane_b32 s{sT0}, v10
    s_nop 3
    s_cmp_eq_u32 s{sRetry}, 0
    s_cselect_b32 s{sT0}, s{sT0}, 0
    s_cmp_lg_u32 s{sT0}, 0
    s_cbranch_scc1 L_fallback
    """)
    for ti in range(4): norm_cv(ti)
    for ti in range(4, 8):
        norm_rd(ti); norm_cv(ti)
    p.e(f"""
    v_and_b32 v10, 31, v{vLane}
    v_mul_u32_u24 v10, {TSTR}, v10
    v_lshrrev_b32 v11, 5, v{vLane}
    v_lshlrev_b32 v11, 4, v11
    v_add_u32 v10, v10, v11
    s_lshl_b32 s{sT0}, s{sW}, 8
    s_add_u32 s{sT0}, s{sT0}, {OTB}
    v_add_u32 v10, s{sT0}, v10
    """)
    for CB in range(2):
        for dt in range(4):
            for ap in range(2):
                d = vQ + (CB*4 + dt)*8 + ap*4
                p.add(Ins(f"ds_write_b128 v10, v[{d}:{d+3}] offset:{CB*32*TSTR + dt*64 + ap*32}", ldswr=['tile']))
    p.e(f"""
    v_and_b32 v10, 15, v{vLane}
    v_lshrrev_b32 v11, 4, v{vLane}
    v_lshlrev_b32 v12, 4, v10
    v_lshlrev_b32 v13, 13, v11
    v_add_u32 v12, v12, v13
    s_lshl_b32 s{sT0}, s{sW}, 8
    v_add_u32 v{vGo}, s{sT0}, v12
    """)
    for r in range(1, 8): p.e(f"v_add_u32 v{vGo+r}, {r*1024}, v{vGo}")
    p.e(f"""
    s_mov_b32 s{S_W}, s{S_WO}
    s_mov_b32 s{S_W+1}, s{S_WO+1}
    s_mov_b32 s{S_W+2}, 524288
    s_mov_b32 s{S_W+3}, 0x20000
    s_mov_b32 s{sGs}, {32*1024}
    s_mov_b32 s{sGo}, {2*32*1024}
    """)
    ld, perm, rdB, mf = gemm_funcs()
    for r in range(8): p.add(ld(2, r))
    p.e(f"s_add_u32 s{sGo}, s{sGo}, s{sGs}")
    p.e(f"""
    v_mul_u32_u24 v10, {TSTR}, v10
    v_lshlrev_b32 v11, 4, v11
    v_add_u32 v10, v10, v11
    v_add_u32 v{vB}, {OTB}, v10
    """)
    from gen_ffn import ffn1, ffn2
    ffn1(p, cfg)
    p.add(Ins("s_barrier", ldsrd=['tile', 'ffn']))
    stamp(p, cfg, 5)
    if cfg.stop == 'ot':
        dump_tile(p, OTB); p.e('L_fallback:'); return
    ffn2(p, cfg)
    gemm(p, cfg, 'o')
    stamp(p, cfg, 6)
    p.e(f"""
    v_lshlrev_b32 v10, 4, v{vLane}
    s_lshl_b32 s{sT0}, s{sG}, 21
    s_lshl_b32 s{sT1}, s{sRB}, 16
    s_add_u32 s{sT0}, s{sT0}, s{sT1}
    s_lshl_b32 s{sT1}, s{sW}, 14
    s_add_u32 s{sT0}, s{sT0}, s{sT1}
    """)
    def accr(j, cb, r): return vACC + 16*j + 4*cb + r
    n = 0
    for cb in range(4):
        for r in range(4):
            t = vRAW + 4*(n % 16)
            for q in range(4): p.e(f"v_cvt_pk_bf16_f32 v{t+q}, v{accr(2*q, cb, r)}, v{accr(2*q+1, cb, r)}")
            if n % 4 == 0 and n > 0: p.e(f"s_add_u32 s{sT0}, s{sT0}, 4096")
            p.e(f"buffer_store_dwordx4 v[{t}:{t+3}], v10, s[{S_WS}:{S_WS+3}], s{sT0} offen offset:{(n % 4)*1024}")
            n += 1
    stamp(p, cfg, 7)
    p.e("s_branch L_fin")
    from gen_ffn import fallback
    fallback(p, cfg, initial_dma, dmaK, rdK, mfK, Sreg, aMF)
    p.e("L_fin:")
```

```python
from asmgen import *
from gen import *
aFG = 192; aFD = 208; aXR = 216

def wave_sum(p, r, t):
    p.e(f"v_add_f32_dpp v{r}, v{r}, v{r} quad_perm:[1,0,3,2] row_mask:0xf bank_mask:0xf")
    p.e(f"v_add_f32_dpp v{r}, v{r}, v{r} quad_perm:[2,3,0,1] row_mask:0xf bank_mask:0xf")
    p.e(f"v_add_f32_dpp v{r}, v{r}, v{r} row_half_mirror row_mask:0xf bank_mask:0xf")
    p.e(f"v_add_f32_dpp v{r}, v{r}, v{r} row_mirror row_mask:0xf bank_mask:0xf")
    p.e(f"v_mov_b32 v{t}, v{r}")
    p.e(f"v_permlane16_swap_b32 v{r}, v{t}")
    p.e(f"v_add_f32 v{r}, v{r}, v{t}")
    p.e(f"v_mov_b32 v{t}, v{r}")
    p.e(f"v_permlane32_swap_b32 v{r}, v{t}")
    p.e(f"v_add_f32 v{r}, v{r}, v{t}")

def ffn1(p, cfg):
    T = 192
    p.e(f"s_cmp_lt_u32 s{sRB}, 28")
    p.e(f"s_cbranch_scc0 L_noffn1")
    for k in range(4): p.e(f"v_accvgpr_read_b32 v{T+k}, a{aXR+k}")
    p.e(f"v_accvgpr_read_b32 v{T+4}, a{aXR+4}")
    U = T + 6
    for k in range(4):
        p.e(f"v_lshlrev_b32 v{U+2*k}, 16, v{T+k}")
        p.e(f"v_and_b32 v{U+2*k+1}, s{sMaskHi}, v{T+k}")
    m, t, a0, a1 = T+14, T+15, T+16, T+18
    p.e(f"v_pk_add_f32 v[{a0}:{a0+1}], v[{U}:{U+1}], v[{U+2}:{U+3}]")
    p.e(f"v_pk_add_f32 v[{a1}:{a1+1}], v[{U+4}:{U+5}], v[{U+6}:{U+7}]")
    p.e(f"v_pk_add_f32 v[{a0}:{a0+1}], v[{a0}:{a0+1}], v[{a1}:{a1+1}]")
    p.e(f"v_add_f32 v{m}, v{a0}, v{a0+1}")
    wave_sum(p, m, t)
    p.e(f"v_mul_f32 v{m}, 0x3b000000, v{m}")
    for k in range(4):
        p.e(f"v_pk_add_f32 v[{U+2*k}:{U+2*k+1}], v[{U+2*k}:{U+2*k+1}], v[{m}:{m+1}] op_sel_hi:[1,0] neg_lo:[0,1] neg_hi:[0,1]")
    p.e(f"v_pk_mul_f32 v[{a0}:{a0+1}], v[{U}:{U+1}], v[{U}:{U+1}]")
    for k in range(1, 4): p.e(f"v_pk_fma_f32 v[{a0}:{a0+1}], v[{U+2*k}:{U+2*k+1}], v[{U+2*k}:{U+2*k+1}], v[{a0}:{a0+1}]")
    p.e(f"v_add_f32 v{a0}, v{a0}, v{a0+1}")
    wave_sum(p, a0, t)
    p.e(f"""v_mul_f32 v{a0}, 0x3b000000, v{a0}
    v_cvt_pk_bf16_f32 v{a0+1}, v{m}, v{a0}
    v_lshlrev_b32 v{a1}, 16, v{a0+1}
    v_and_b32 v{a0+1}, s{sMaskHi}, v{a0+1}
    v_add_f32 v{a0+1}, 0x3727c5ac, v{a0+1}
    v_cvt_pk_bf16_f32 v{a0+1}, v{a0+1}, v{a0+1}
    v_and_b32 v{a0+1}, s{sMaskHi}, v{a0+1}
    v_sqrt_f32 v{a0+1}, v{a0+1}
    v_sub_f32 v{a1}, v{m}, v{a1}
    v_cvt_pk_bf16_f32 v{a0+1}, v{a0+1}, v{a0+1}
    v_and_b32 v{a0+1}, s{sMaskHi}, v{a0+1}
    v_rcp_f32 v{a0}, v{a0+1}
    s_nop 0
    v_mul_f32 v{a1}, v{a1}, v{a0}
    v_lshlrev_b32 v{U}, 16, v{T+4}
    v_and_b32 v{U+1}, s{sMaskHi}, v{T+4}
    v_pk_add_f32 v[{U}:{U+1}], v[{U}:{U+1}], v[{m}:{m+1}] op_sel_hi:[1,0] neg_lo:[0,1] neg_hi:[0,1]
    v_pk_fma_f32 v[{U}:{U+1}], v[{U}:{U+1}], v[{a0}:{a0+1}], v[{a1}:{a1+1}] op_sel_hi:[1,0,0]
    v_cvt_pk_bf16_f32 v{T}, v{U}, v{U+1}""")
    XS = T
    R = T + 24
    for k in range(16): p.e(f"v_accvgpr_read_b32 v{R+k}, a{aFG+k}")
    V = T + 40
    for mat in range(2):
        for c in range(8):
            lo = R + 8*mat + c//2; hi = R + 8*mat + 4 + c//2
            t_ = T + 2 + (c % 4)
            p.e(f"v_perm_b32 v{t_}, v{hi}, v{lo}, s{sPL + c % 2}")
            p.e(f"v_dot2_f32_bf16 v{V + 8*mat + c}, v{t_}, v{XS}, 0")
    p.e("s_nop 2")
    for c in range(8):
        p.e(f"v_permlane32_swap_b32 v{V+c}, v{V+8+c}")
    for c in range(8):
        p.e(f"v_add_f32 v{V+c}, v{V+c}, v{V+8+c}")
    for c in range(4):
        p.e(f"v_permlane16_swap_b32 v{V+c}, v{V+4+c}")
    for c in range(4):
        p.e(f"v_add_f32 v{V+c}, v{V+c}, v{V+4+c}")
    for mod in ("quad_perm:[1,0,3,2]", "quad_perm:[2,3,0,1]", "row_half_mirror", "row_mirror"):
        for c in range(4):
            p.e(f"v_add_f32_dpp v{V+c}, v{V+c}, v{V+c} {mod} row_mask:0xf bank_mask:0xf")
    p.e(f"""
    v_lshrrev_b32 v{T+2}, 4, v{vLane}
    v_lshlrev_b32 v{T+2}, 4, v{T+2}
    s_lshl_b32 s{sT0}, s{sW}, 6
    s_add_u32 s{sT0}, s{sT0}, {SCR + 64}
    v_add_u32 v{T+2}, s{sT0}, v{T+2}
    """)
    p.add(Ins(f"ds_write_b128 v{T+2}, v[{V}:{V+3}]", ldswr=['ffn']))
    p.e("L_noffn1:")

def ffn2(p, cfg):
    T = 192
    H = 64
    p.e(f"s_cmp_lt_u32 s{sRB}, 28")
    p.e(f"s_cbranch_scc0 L_noffn2")
    p.e(f"""
    v_and_b32 v{T}, 15, v{vLane}
    v_lshlrev_b32 v{T}, 2, v{T}
    v_add_u32 v{T}, {SCR + 64}, v{T}
    ds_read_b32 v{T+1}, v{T}
    ds_read_b32 v{T+2}, v{T} offset:64
    ds_read_b32 v{T+3}, v{T} offset:128
    ds_read_b32 v{T+4}, v{T} offset:192
    """)
    for k in range(8): p.e(f"v_accvgpr_read_b32 v{T+16+k}, a{aFD+k}")
    p.e(f"""
    v_add_f32 v{T+1}, v{T+1}, v{T+2}
    v_add_f32 v{T+3}, v{T+3}, v{T+4}
    v_add_f32 v{T+1}, v{T+1}, v{T+3}
    v_cvt_pk_bf16_f32 v{T+1}, v{T+1}, v{T+1}
    v_and_b32 v{T+1}, s{sMaskHi}, v{T+1}
    v_mul_f32 v{T+2}, 0xbfb8aa3b, v{T+1}          ; -x*log2e
    v_exp_f32 v{T+2}, v{T+2}
    s_nop 0
    v_add_f32 v{T+2}, 1.0, v{T+2}
    v_rcp_f32 v{T+2}, v{T+2}
    s_nop 0
    v_mul_f32 v{T+2}, v{T+1}, v{T+2}              ; silu
    v_cvt_pk_bf16_f32 v{T+2}, v{T+2}, v{T+2}
    v_and_b32 v{T+2}, s{sMaskHi}, v{T+2}
    v_mov_b32_dpp v{T+3}, v{T+1} row_ror:8 row_mask:0xf bank_mask:0xf
    v_mul_f32 v{T+2}, v{T+2}, v{T+3}
    v_cvt_pk_bf16_f32 v{T+2}, v{T+2}, v{T+2}
    v_and_b32 v{T+2}, s{sMaskHi}, v{T+2}
    s_nop 0
    """)
    for e in range(8): p.e(f"v_readlane_b32 s{H+e}, v{T+2}, {e}")
    p.e(f"v_mov_b32 v{T+8}, 0")
    p.e(f"v_mov_b32 v{T+9}, 0")
    for e in range(8):
        p.e(f"v_lshlrev_b32 v{T+4}, 16, v{T+16+e}")
        p.e(f"v_and_b32 v{T+5}, s{sMaskHi}, v{T+16+e}")
        p.e(f"v_fmac_f32 v{T+8}, s{H+e}, v{T+4}")
        p.e(f"v_fmac_f32 v{T+9}, s{H+e}, v{T+5}")
    p.e(f"v_lshlrev_b32 v{T+6}, 3, v0")
    p.e(f"v_add_u32 v{T+6}, {WS_YACC}, v{T+6}")
    for e in range(2):
        i = Ins(f"buffer_atomic_add_f32 v{T+8+e}, v{T+6}, s[{S_WS}:{S_WS+3}], 0 offen offset:{4*e}"); i.kind = 'ctl'; p.add(i)
    p.e("L_noffn2:")

def fallback(p, cfg, initial_dma, dmaK, rdK, mfK, Sreg, aMF):
    p.e(f"""
    L_fallback:
    s_mov_b32 s{sRetry}, 1
    v_mov_b32 v10, 0xff800000
    v_mov_b32 v11, 0xff800000
    s_mov_b32 s{sKg}, 0
    s_mov_b32 s{sKm}, 0
    L_fb_loop:
    s_waitcnt vmcnt(0) lgkmcnt(0)
    s_barrier
    """)
    for e in range(2):
        for i in dmaK(e, 'FB'): p.add(i)
    p.e("s_waitcnt vmcnt(0)")
    p.e("s_barrier")
    for u in range(8):
        for i in rdK(0, u, 0): p.add(i)
        p.e("s_waitcnt lgkmcnt(0)")
        for CB in range(2): p.add(mfK(0, u, CB, 0, czero=True))
        p.e("s_nop 7")
    p.e("s_nop 15")
    for CB in range(2):
        s = Sreg(0, CB, 0)
        for r in range(0, 16, 2): p.e(f"v_max3_f32 v{10+CB}, v{10+CB}, v{s+r}, v{s+r+1}")
    p.e(f"""
    s_add_u32 s{sKg}, s{sKg}, 8192
    s_cmp_lt_u32 s{sKg}, {16*8192}
    s_cbranch_scc1 L_fb_loop
    v_mov_b32 v12, v10
    v_mov_b32 v13, v11
    s_nop 1
    v_permlane32_swap_b32 v10, v12
    v_permlane32_swap_b32 v11, v13
    v_max_f32 v10, v10, v12
    v_max_f32 v11, v11, v13
    v_accvgpr_write_b32 a{aMF}, v10
    v_accvgpr_write_b32 a{aMF+1}, v11
    """)
    for k in range(128): p.e(f"v_accvgpr_write_b32 a{aO+k}, 0")
    p.e("s_waitcnt vmcnt(0) lgkmcnt(0)")
    p.e("s_barrier")
    initial_dma()
    p.e("s_waitcnt vmcnt(0)")
    p.e("s_branch L_attn")
```

```python
from asmgen import *
from gen import WS_PART, WS_XN, WS_YACC, WS_KEY, WS_SIZE, srd

def k3(cfg):
    p = Prog()
    S_X, S_WS, S_O = 8, 12, 16
    p.e(f"""
    s_cmp_ge_u32 s2, 256
    s_cbranch_scc1 L3_end
    s_load_dwordx2 s[4:5], s[0:1], 0
    s_load_dwordx2 s[6:7], s[0:1], 80
    s_load_dwordx2 s[20:21], s[0:1], 96
    v_and_b32 v1, 63, v0                      ; lane
    v_lshrrev_b32 v2, 6, v0                   ; wave
    v_and_b32 v3, 7, v0                       ; rho
    v_lshrrev_b32 v4, 3, v0                   ; chunk c (0..63)
    s_lshl_b32 s3, s2, 3
    v_add_u32 v5, s3, v3                      ; row
    v_lshlrev_b32 v6, 10, v5
    v_lshlrev_b32 v7, 4, v4
    v_add_u32 v6, v6, v7                      ; row*1024 + c*16
    s_lshr_b32 s22, s2, 3                     ; rb
    s_lshl_b32 s22, s22, 16
    s_and_b32 s23, s2, 7
    s_lshr_b32 s24, s23, 1                    ; cb
    s_lshl_b32 s24, s24, 12
    s_add_u32 s22, s22, s24
    s_and_b32 s24, s23, 1
    s_lshl_b32 s24, s24, 7                    ; 8*(wg&1)*16
    s_add_u32 s22, s22, s24
    v_lshrrev_b32 v8, 4, v4                   ; w
    v_lshlrev_b32 v8, 14, v8
    v_and_b32 v9, 3, v4                       ; r
    v_lshlrev_b32 v9, 10, v9
    v_add_u32 v8, v8, v9
    v_bfe_u32 v9, v4, 2, 2                    ; kq
    v_lshlrev_b32 v9, 8, v9
    v_add_u32 v8, v8, v9
    v_lshlrev_b32 v9, 4, v3                   ; rho*16
    v_add_u32 v8, v8, v9
    v_add_u32 v8, s22, v8
    s_mov_b32 s25, 0xffff0000
    s_waitcnt lgkmcnt(0)
    """)
    srd(p, S_X, 4, 5, 2048*1024)
    srd(p, S_O, 6, 7, 2048*1024)
    srd(p, S_WS, 20, 21, WS_SIZE)
    p.e(f"s_mov_b32 s26, {WS_KEY}")
    p.e(f"s_load_dword s27, s[20:21], s26")
    for g in range(8):
        p.e(f"s_mov_b32 s{30+g}, {WS_PART + g*(1 << 21)}")
        p.e(f"buffer_load_dwordx4 v[{16+4*g}:{19+4*g}], v8, s[{S_WS}:{S_WS+3}], s{30+g} offen")
    p.e(f"s_mov_b32 s38, {WS_XN}")
    p.e(f"buffer_load_dwordx4 v[48:51], v6, s[{S_WS}:{S_WS+3}], s38 offen")
    p.e(f"buffer_load_dwordx4 v[52:55], v6, s[{S_X}:{S_X+3}], 0 offen")
    p.e(f"""
    s_waitcnt lgkmcnt(0)
    s_and_b32 s28, s27, 0xffff
    s_sub_u32 s28, 0xffff, s28
    s_and_b32 s28, s28, 0x7ff                 ; idx
    s_lshr_b32 s29, s28, 3
    s_cmp_eq_u32 s29, s2
    s_cselect_b32 s39, 1, 0
    v_lshlrev_b32 v9, 5, v4                   ; c*32 bytes
    v_mov_b32 v56, 0
    v_mov_b32 v57, 0
    v_mov_b32 v58, 0
    v_mov_b32 v59, 0
    v_mov_b32 v60, 0
    v_mov_b32 v61, 0
    v_mov_b32 v62, 0
    v_mov_b32 v63, 0
    s_cbranch_scc0 L3_noy
    s_mov_b32 s40, {WS_YACC}
    buffer_load_dwordx4 v[56:59], v9, s[{S_WS}:{S_WS+3}], s40 offen
    buffer_load_dwordx4 v[60:63], v9, s[{S_WS}:{S_WS+3}], s40 offen offset:16
    s_waitcnt vmcnt(0)
    s_lshr_b32 s41, s27, 16
    s_and_b32 s42, s41, 0x8000
    s_cmp_lg_u32 s42, 0
    s_mov_b32 s45, 0xffff
    s_cselect_b32 s42, 0x8000, s45
    s_xor_b32 s41, s41, s42
    s_lshl_b32 s41, s41, 16
    v_mov_b32 v10, s41
    v_mul_f32 v10, 0xbfb8aa3b, v10
    v_exp_f32 v10, v10
    s_nop 0
    v_add_f32 v10, 1.0, v10
    v_rcp_f32 v10, v10
    s_nop 0
    v_cvt_pk_bf16_f32 v10, v10, v10
    v_and_b32 v10, s25, v10
    v_cmp_eq_u32 vcc, s28, v5
    """)
    for k in range(0, 8, 2):
        p.e(f"v_cvt_pk_bf16_f32 v11, v{56+k}, v{57+k}")
        p.e(f"v_lshlrev_b32 v{56+k}, 16, v11")
        p.e(f"v_and_b32 v{57+k}, s25, v11")
        p.e(f"v_mul_f32 v{56+k}, v{56+k}, v10")
        p.e(f"v_mul_f32 v{57+k}, v{57+k}, v10")
        p.e(f"v_cvt_pk_bf16_f32 v11, v{56+k}, v{57+k}")
        p.e(f"v_lshlrev_b32 v{56+k}, 16, v11")
        p.e(f"v_and_b32 v{57+k}, s25, v11")
        p.e(f"v_cndmask_b32 v{56+k}, 0, v{56+k}, vcc")
        p.e(f"v_cndmask_b32 v{57+k}, 0, v{57+k}, vcc")
    p.e("L3_noy:")
    p.e("s_mov_b32 s43, 0x00003f80")
    p.e("s_mov_b32 s44, 0x3f800000")
    A = 2
    p.e("s_waitcnt vmcnt(0)")
    ACC = 8
    for k in range(4):
        p.e(f"v_lshlrev_b32 v{ACC+2*k}, 16, v{16+k}")
        p.e(f"v_and_b32 v{ACC+2*k+1}, s25, v{16+k}")
    for g in range(1, 8):
        for k in range(4):
            p.e(f"v_dot2_f32_bf16 v{ACC+2*k}, v{16+4*g+k}, s43, v{ACC+2*k}")
            p.e(f"v_dot2_f32_bf16 v{ACC+2*k+1}, v{16+4*g+k}, s44, v{ACC+2*k+1}")
    p.e("s_nop 2")
    for k in range(4):
        e0, e1 = ACC + 2*k, ACC + 2*k + 1
        t = 16
        p.e(f"""
        v_cvt_pk_bf16_f32 v{t}, v{e0}, v{e1}
        v_lshlrev_b32 v{e0}, 16, v{t}
        v_and_b32 v{e1}, s25, v{t}
        v_lshlrev_b32 v{t+1}, 16, v{48+k}
        v_and_b32 v{t+2}, s25, v{48+k}
        v_add_f32 v{t+1}, v{t+1}, v{56+2*k}
        v_add_f32 v{t+2}, v{t+2}, v{57+2*k}
        v_cvt_pk_bf16_f32 v{t}, v{t+1}, v{t+2}
        v_lshlrev_b32 v{t+1}, 16, v{t}
        v_and_b32 v{t+2}, s25, v{t}
        v_mul_f32 v{t+3}, 0xbfb8aa3b, v{t+1}
        v_mul_f32 v{t+4}, 0xbfb8aa3b, v{t+2}
        v_exp_f32 v{t+3}, v{t+3}
        v_exp_f32 v{t+4}, v{t+4}
        s_nop 0
        v_add_f32 v{t+3}, 1.0, v{t+3}
        v_add_f32 v{t+4}, 1.0, v{t+4}
        v_rcp_f32 v{t+3}, v{t+3}
        v_rcp_f32 v{t+4}, v{t+4}
        s_nop 0
        v_mul_f32 v{t+3}, v{t+1}, v{t+3}
        v_mul_f32 v{t+4}, v{t+2}, v{t+4}
        v_cvt_pk_bf16_f32 v{t}, v{t+3}, v{t+4}
        v_lshlrev_b32 v{t+3}, 16, v{t}
        v_and_b32 v{t+4}, s25, v{t}
        v_mul_f32 v{t+3}, v{e0}, v{t+3}
        v_mul_f32 v{t+4}, v{e1}, v{t+4}
        v_cvt_pk_bf16_f32 v{t}, v{t+3}, v{t+4}
        v_lshlrev_b32 v{t+3}, 16, v{t}
        v_and_b32 v{t+4}, s25, v{t}
        v_lshlrev_b32 v{t+1}, 16, v{52+k}
        v_and_b32 v{t+2}, s25, v{52+k}
        v_add_f32 v{t+1}, v{t+1}, v{t+3}
        v_add_f32 v{t+2}, v{t+2}, v{t+4}
        v_cvt_pk_bf16_f32 v{24+k}, v{t+1}, v{t+2}
        """)
    p.e(f"buffer_store_dwordx4 v[24:27], v6, s[{S_O}:{S_O+3}], 0 offen")
    p.e("L3_end:")
    p.e("s_endpgm")
    p.autowait(); p.fix_hazards()
    return p
```

```python
import sys
from asmgen import *

NAME = "recurrent_scan__sliding_block_cached__moe_arch_mod__prompt"
K2 = NAME + "_kernel"
K3 = "fin_kernel"

TSTR = 1040
KSLOT = 8320; VSLOT = 8384
KB = 0; VB = 4 * KSLOT
OTB = 0
XNB = 97280
SCR = 66816
LDS_BYTES = 163840
WS_PART = 0
WS_XN = 0x1000000
WS_YACC = 0x1200000
WS_KEY = 0x1200800
WS_DBG = 0x1300000
WS_SIZE = 0x10000000
S_W = 4; S_X = 8; S_K = 12; S_V = 16; S_WS = 20; S_WR = 24; S_WG = 28; S_WU = 32; S_WD = 36; S_DBG = 40; S_WO = 44; S_WQ = 48
sG, sRB, sW, sR0, sPh, sPL, sPH, sGo, sGs, sCnt, sTrig, sMaskHi = range(52, 64)
sKg, sVg, sKm, sVm, sKd, sVd, sKmB, sVmB, sRetry, sT0, sT1, sT2, sT3, sT4, sT5, sIdx, sFF = range(64, 81)
sOffA, sOffB = 81, 82
sC = 84
sTS = 86
vLane = 1
vKa0, vKa1, vVa, vKd, vVd, vB = 2, 3, 4, 5, 6, 7
vL = 8
vT = 10
vF = 16
vGo = 24
vP = 16
vRAW = 32
vNEG = 96
vACC = 128
vQ = 128
vS = 192
aB = 0
aO = 64
aWR = 192
aDUM = 252

def srd(p, dst, lo, hi, size):
    p.e(f"""s_mov_b32 s{dst}, s{lo}
    s_and_b32 s{dst+1}, s{hi}, 0xffff
    s_mov_b32 s{dst+2}, {size}
    s_mov_b32 s{dst+3}, 0x20000""")

def srd_off(p, dst, lo, hi, off_sreg, size):
    p.e(f"""s_add_u32 s{dst}, s{lo}, s{off_sreg}
    s_addc_u32 s{dst+1}, s{hi}, 0
    s_and_b32 s{dst+1}, s{dst+1}, 0xffff
    s_mov_b32 s{dst+2}, {size}
    s_mov_b32 s{dst+3}, 0x20000""")

class Cfg:
    def __init__(self, **kw):
        self.stop = kw.get('stop')
        self.stamps = kw.get('stamps', False)

def stamp(p, cfg, n):
    if cfg.stamps:
        p.e(f"s_memtime s[{sTS + 2*n}:{sTS + 2*n + 1}]")

def gemm_funcs():
    def ld(s, r):
        b = vRAW + 32*s + 4*r
        return Ins(f"buffer_load_dwordx4 v[{b}:{b+3}], v{vGo+r}, s[{S_W}:{S_W+3}], s{sGo} offen")
    def perm(s, j):
        f = vF + 4*(j % 2)
        out = []
        for q in range(4):
            lo = vRAW + 32*s + 4*(2*q) + j//2
            hi = vRAW + 32*s + 4*(2*q+1) + j//2
            out.append(Ins(f"v_perm_b32 v{f+q}, v{hi}, v{lo}, s{sPL + j % 2}"))
        return out
    def rdB(slot, toff, cb):
        b = aB + slot*16 + 4*cb
        return Ins(f"ds_read_b128 a[{b}:{b+3}], v{vB} offset:{toff*64 + cb*16*TSTR}", ldsrd=['tile'])
    def mf(slot, j, cb, first=False):
        acc = vACC + 16*j + 4*cb
        b = aB + slot*16 + 4*cb
        f = vF + 4*(j % 2)
        c = '0' if first else f"v[{acc}:{acc+3}]"
        return Ins(f"v_mfma_f32_16x16x32_bf16 v[{acc}:{acc+3}], v[{f}:{f+3}], a[{b}:{b+3}], {c}")
    return ld, perm, rdB, mf

def gemm(p, cfg, tag, extra_loop_end=None):
    ld, perm, rdB, mf = gemm_funcs()
    for cb in range(4): p.add(rdB(0, 0, cb))
    for i in perm(0, 0): p.add(i)
    for j in range(8):
        nxt = perm(0, j+1) if j < 7 else perm(1, 0)
        for cb in range(4):
            p.add(mf(0, j, cb, first=True))
            if cb < 2:
                p.add(nxt[2*cb]); p.add(nxt[2*cb+1])
            if cb == 3 and j < 4: p.add(rdB(1, 1, j))
    p.e(f"s_mov_b32 s{sCnt}, 0")
    p.loop(5)
    p.e(f"L_g{tag}:")
    for tt in range(3):
        t = 1 + tt
        s = t % 3
        for j in range(8):
            nxt = perm(s, j+1) if j < 7 else perm((t+1) % 3, 0)
            for cb in range(4):
                p.add(mf(s, j, cb))
                if cb < 2:
                    p.add(nxt[2*cb]); p.add(nxt[2*cb+1])
                if cb == 2: p.add(ld((t+2) % 3, j))
                if cb == 3 and j < 4:
                    p.add(rdB((t+1) % 3, t + 1, j))
                if cb == 3 and j == 7:
                    p.e(f"s_add_u32 s{sGo}, s{sGo}, s{sGs}")
        if tt == 2:
            pass
    p.e(f"v_add_u32 v{vB}, {3*64}, v{vB}")
    p.e(f"s_add_u32 s{sCnt}, s{sCnt}, 1")
    if extra_loop_end: extra_loop_end(p)
    p.e(f"s_cmp_lt_u32 s{sCnt}, 5")
    p.e(f"s_cbranch_scc1 L_g{tag}")
    p.lin()

def ln_group(p, X, U, vaddr):
    a0, a1 = vT, vT + 2
    m = vT + 4
    for k in range(32):
        p.e(f"v_lshlrev_b32 v{U+2*k}, 16, v{X+k}")
        p.e(f"v_and_b32 v{U+2*k+1}, s{sMaskHi}, v{X+k}")
    p.e(f"v_pk_add_f32 v[{a0}:{a0+1}], v[{U}:{U+1}], v[{U+2}:{U+3}]")
    p.e(f"v_pk_add_f32 v[{a1}:{a1+1}], v[{U+4}:{U+5}], v[{U+6}:{U+7}]")
    for k in range(4, 32, 2):
        p.e(f"v_pk_add_f32 v[{a0}:{a0+1}], v[{a0}:{a0+1}], v[{U+2*k}:{U+2*k+1}]")
        p.e(f"v_pk_add_f32 v[{a1}:{a1+1}], v[{a1}:{a1+1}], v[{U+2*k+2}:{U+2*k+3}]")
    def red8(r):
        p.e(f"v_add_f32_dpp v{r}, v{r}, v{r} quad_perm:[1,0,3,2] row_mask:0xf bank_mask:0xf")
        p.e(f"v_add_f32_dpp v{r}, v{r}, v{r} quad_perm:[2,3,0,1] row_mask:0xf bank_mask:0xf")
        p.e(f"v_add_f32_dpp v{r}, v{r}, v{r} row_half_mirror row_mask:0xf bank_mask:0xf")
    p.e(f"v_pk_add_f32 v[{a0}:{a0+1}], v[{a0}:{a0+1}], v[{a1}:{a1+1}]")
    p.e(f"v_add_f32 v{m}, v{a0}, v{a0+1}")
    red8(m)
    p.e(f"v_mul_f32 v{m}, 0x3b000000, v{m}")
    for k in range(32):
        p.e(f"v_pk_add_f32 v[{U+2*k}:{U+2*k+1}], v[{U+2*k}:{U+2*k+1}], v[{m}:{m+1}] op_sel_hi:[1,0] neg_lo:[0,1] neg_hi:[0,1]")
    p.e(f"v_pk_mul_f32 v[{a0}:{a0+1}], v[{U}:{U+1}], v[{U}:{U+1}]")
    p.e(f"v_pk_mul_f32 v[{a1}:{a1+1}], v[{U+2}:{U+3}], v[{U+2}:{U+3}]")
    for k in range(2, 32, 2):
        p.e(f"v_pk_fma_f32 v[{a0}:{a0+1}], v[{U+2*k}:{U+2*k+1}], v[{U+2*k}:{U+2*k+1}], v[{a0}:{a0+1}]")
        p.e(f"v_pk_fma_f32 v[{a1}:{a1+1}], v[{U+2*k+2}:{U+2*k+3}], v[{U+2*k+2}:{U+2*k+3}], v[{a1}:{a1+1}]")
    p.e(f"v_pk_add_f32 v[{a0}:{a0+1}], v[{a0}:{a0+1}], v[{a1}:{a1+1}]")
    p.e(f"v_add_f32 v{a0}, v{a0}, v{a0+1}")
    red8(a0)
    p.e(f"v_mul_f32 v{a0}, 0x3b000000, v{a0}")
    p.e(f"v_cvt_pk_bf16_f32 v{a0+1}, v{m}, v{a0}")
    p.e(f"v_lshlrev_b32 v{a1}, 16, v{a0+1}")
    p.e(f"v_and_b32 v{a0+1}, s{sMaskHi}, v{a0+1}")
    p.e(f"v_add_f32 v{a0+1}, 0x3727c5ac, v{a0+1}")
    p.e(f"v_cvt_pk_bf16_f32 v{a0+1}, v{a0+1}, v{a0+1}")
    p.e(f"v_and_b32 v{a0+1}, s{sMaskHi}, v{a0+1}")
    p.e(f"v_sqrt_f32 v{a0+1}, v{a0+1}")
    p.e(f"v_sub_f32 v{a1}, v{m}, v{a1}")
    p.e(f"v_cvt_pk_bf16_f32 v{a0+1}, v{a0+1}, v{a0+1}")
    p.e(f"v_and_b32 v{a0+1}, s{sMaskHi}, v{a0+1}")
    p.e(f"v_rcp_f32 v{a0}, v{a0+1}")
    p.e(f"s_nop 0")
    p.e(f"v_mul_f32 v{a1}, v{a1}, v{a0}")
    for k in range(32):
        p.e(f"v_pk_fma_f32 v[{U+2*k}:{U+2*k+1}], v[{U+2*k}:{U+2*k+1}], v[{a0}:{a0+1}], v[{a1}:{a1+1}] op_sel_hi:[1,0,0]")
        p.e(f"v_cvt_pk_bf16_f32 v{X+k}, v{U+2*k}, v{U+2*k+1}")
        if k % 4 == 3:
            j = k // 4
            p.e(f"ds_write_b128 v{vaddr}, v[{X+4*j}:{X+4*j+3}] offset:{j*128}", ldswr=['tile'])

def k2(cfg):
    p = Prog()
    p.e(f"""
    s_cmp_ge_u32 s2, 256
    s_cbranch_scc1 L_end
    s_load_dwordx16 s[64:79], s[0:1], 0
    s_load_dwordx8 s[80:87], s[0:1], 64
    s_load_dwordx2 s[88:89], s[0:1], 96
    v_and_b32 v{vLane}, 63, v0
    v_lshrrev_b32 v2, 6, v0
    s_and_b32 s{sG}, s2, 7
    s_lshr_b32 s{sRB}, s2, 3
    v_readfirstlane_b32 s{sW}, v2
    s_lshl_b32 s{sR0}, s{sRB}, 6
    s_mov_b32 s{sMaskHi}, 0xffff0000
    s_mov_b32 s{sPL}, 0x05040100
    s_mov_b32 s{sPH}, 0x07060302
    s_waitcnt lgkmcnt(0)
    """)
    srd(p, S_X, 64, 65, 2048*1024)
    srd(p, S_WQ, 70, 71, 512*8192)
    srd(p, S_WR, 76, 77, 1024)
    srd(p, S_WS, 88, 89, WS_SIZE)
    srd(p, S_DBG, 86, 87, 256)
    srd(p, S_WG, 78, 79, 512*3584)
    srd(p, S_WU, 80, 81, 512*3584)
    srd(p, S_WD, 82, 83, 1792*1024)
    p.e(f"s_lshl_b32 s3, s{sG}, 19")
    srd_off(p, S_WO, 72, 73, 3, 524288)
    p.e(f"s_add_u32 s3, s3, {1536*256}")
    srd_off(p, S_K, 66, 67, 3, 131072)
    srd_off(p, S_V, 68, 69, 3, 131072)
    p.e(f"""
    s_lshr_b32 s{sT0}, s{sG}, 1
    s_cmp_eq_u32 s{sT0}, s{sW}
    s_cselect_b32 s{sTrig}, 1, 0xffff
    s_and_b32 s{sT1}, s{sG}, 1
    s_lshl_b32 s{sOffB}, s{sT1}, 3
    s_xor_b32 s{sOffA}, s{sOffB}, 8
    """)
    p.e(f"""
    v_lshrrev_b32 v10, 3, v{vLane}
    v_and_b32 v11, 7, v{vLane}
    s_lshl_b32 s{sT0}, s{sW}, 4
    s_add_u32 s{sT1}, s{sT0}, s{sR0}          ; R0 + 16w
    v_add_u32 v12, s{sT1}, v10
    v_lshlrev_b32 v12, 10, v12
    v_lshlrev_b32 v13, 4, v11
    v_add_u32 v12, v12, v13                   ; x voffset
    s_lshl_b32 s{sT2}, s{sOffA}, 10
    s_lshl_b32 s{sT3}, s{sOffB}, 10
    """)
    p.e(f"""
    s_or_b32 s{sT4}, s2, s{sW}
    s_cmp_eq_u32 s{sT4}, 0
    s_cbranch_scc0 L_nozero
    v_mov_b32 v16, 0
    v_mov_b32 v17, 0
    v_mov_b32 v18, 0
    v_mov_b32 v19, 0
    v_lshlrev_b32 v20, 4, v{vLane}
    v_add_u32 v20, {WS_YACC}, v20
    """)
    p.add(Ins(f"buffer_store_dwordx4 v[16:19], v20, s[{S_WS}:{S_WS+3}], 0 offen sc0 sc1"))
    p.add(Ins(f"buffer_store_dwordx4 v[16:19], v20, s[{S_WS}:{S_WS+3}], 0 offen offset:1024 sc0 sc1"))
    p.e("L_nozero:")
    p.e(f"""
    s_cmp_eq_u32 s{sTrig}, 1
    s_cbranch_scc0 L_nowr
    """)
    for j in range(8):
        p.e(f"buffer_load_dwordx4 a[{aWR+4*j}:{aWR+4*j+3}], v13, s[{S_WR}:{S_WR+3}], 0 offen offset:{j*128}")
    p.e("L_nowr:")
    XA, XB = vACC, vACC + 32
    for j in range(8): p.e(f"buffer_load_dwordx4 v[{XA+4*j}:{XA+4*j+3}], v12, s[{S_X}:{S_X+3}], s{sT2} offen offset:{j*128}")
    for j in range(8): p.e(f"buffer_load_dwordx4 v[{XB+4*j}:{XB+4*j+3}], v12, s[{S_X}:{S_X+3}], s{sT3} offen offset:{j*128}")
    p.e(f"""
    v_and_b32 v14, 15, v{vLane}
    v_lshrrev_b32 v15, 4, v{vLane}
    v_lshlrev_b32 v16, 4, v14                 ; i*16
    v_lshlrev_b32 v17, 16, v15                ; kq*8*8192
    v_add_u32 v16, v16, v17
    s_lshl_b32 s{sT0}, s{sG}, 2
    s_add_u32 s{sT0}, s{sT0}, s{sW}
    s_lshl_b32 s{sT0}, s{sT0}, 8
    v_add_u32 v{vGo}, s{sT0}, v16
    """)
    for r in range(1, 8): p.e(f"v_add_u32 v{vGo+r}, {r*8192}, v{vGo}")
    p.e(f"""
    s_mov_b32 s{S_W}, s{S_WQ}
    s_mov_b32 s{S_W+1}, s{S_WQ+1}
    s_mov_b32 s{S_W+2}, {512*8192}
    s_mov_b32 s{S_W+3}, 0x20000
    s_mov_b32 s{sGs}, {32*8192}
    s_mov_b32 s{sGo}, 0
    """)
    ld, perm, rdB, mf = gemm_funcs()
    for s in range(3):
        for r in range(8): p.add(ld(s, r))
        p.e(f"s_add_u32 s{sGo}, s{sGo}, s{sGs}")
    p.e(f"""
    v_lshlrev_b32 v18, 4, v{vLane}            ; lane*16
    s_lshl_b32 s{sT0}, s{sRB}, 4
    s_lshl_b32 s{sT1}, s{sW}, 2
    s_add_u32 s{sT0}, s{sT0}, s{sT1}
    s_lshl_b32 s{sT1}, s{sT0}, 13             ; *8192
    s_lshl_b32 s{sT2}, s{sG}, 10
    s_add_u32 s{sT1}, s{sT1}, s{sT2}
    """)
    for e in range(4):
        p.e(f"buffer_load_dwordx4 a[{aDUM}:{aDUM+3}], v18, s[{S_WQ}:{S_WQ+3}], s{sT1} offen")
        if e < 3: p.e(f"s_add_u32 s{sT1}, s{sT1}, 8192")
    p.e(f"""
    s_lshl_b32 s{sT1}, s{sRB}, 12
    s_lshl_b32 s{sT2}, s{sW}, 10
    s_add_u32 s{sT1}, s{sT1}, s{sT2}          ; rb*4096 + w*1024
    """)
    p.e(f"buffer_load_dwordx4 a[{aDUM}:{aDUM+3}], v18, s[{S_K}:{S_K+3}], s{sT1} offen")
    p.e(f"buffer_load_dwordx4 a[{aDUM}:{aDUM+3}], v18, s[{S_V}:{S_V+3}], s{sT1} offen")
    p.e(f"s_lshl_b32 s{sT1}, s{sT1}, 2")
    for e in range(4):
        p.e(f"buffer_load_dwordx4 a[{aDUM}:{aDUM+3}], v18, s[{S_WO}:{S_WO+3}], s{sT1} offen offset:{e*1024}")
    for k in range(128): p.e(f"v_accvgpr_write_b32 a{aO+k}, 0")
    p.e(f"""
    s_lshl_b32 s{sT0}, s{sW}, 4
    v_add_u32 v14, s{sT0}, v10
    v_mul_u32_u24 v14, {TSTR}, v14
    v_lshlrev_b32 v15, 4, v11
    v_add_u32 v14, v14, v15
    s_mul_i32 s{sT0}, s{sOffA}, {TSTR}
    s_add_u32 s{sT0}, s{sT0}, {XNB}
    s_mul_i32 s{sT1}, s{sOffB}, {TSTR}
    s_add_u32 s{sT1}, s{sT1}, {XNB}
    v_add_u32 v8, s{sT0}, v14
    v_add_u32 v9, s{sT1}, v14
    v_mov_b32 v6, v12
    """)
    stamp(p, cfg, 0)
    ln_group(p, XA, vACC + 64, 8)
    ln_group(p, XB, vACC + 64, 9)
    U = vACC + 64
    p.e(f"""
    s_cmp_eq_u32 s{sTrig}, 1
    s_cbranch_scc0 L_nospec
    """)
    for k in range(32): p.e(f"v_accvgpr_read_b32 v{U+k}, a{aWR+k}")
    p.e(f"s_lshl_b32 s{sT3}, s{sOffB}, 10")
    p.e(f"s_add_u32 s{sT3}, s{sT3}, {WS_XN}")
    for j in range(8):
        p.e(f"buffer_store_dwordx4 v[{XB+4*j}:{XB+4*j+3}], v6, s[{S_WS}:{S_WS+3}], s{sT3} offen offset:{j*128}")
    p.e(f"v_mov_b32 v10, 0")
    p.e(f"v_mov_b32 v11, 0")
    for k in range(0, 32, 2):
        p.e(f"v_dot2_f32_bf16 v10, v{XB+k}, v{U+k}, v10")
        p.e(f"v_dot2_f32_bf16 v11, v{XB+k+1}, v{U+k+1}, v11")
    p.e(f"""
    v_add_f32 v10, v10, v11
    v_add_f32_dpp v10, v10, v10 quad_perm:[1,0,3,2] row_mask:0xf bank_mask:0xf
    v_add_f32_dpp v10, v10, v10 quad_perm:[2,3,0,1] row_mask:0xf bank_mask:0xf
    v_add_f32_dpp v10, v10, v10 row_half_mirror row_mask:0xf bank_mask:0xf
    v_cvt_pk_bf16_f32 v10, v10, v10
    v_and_b32 v10, 0xffff, v10
    v_lshrrev_b32 v11, 15, v10                ; sign
    v_mul_u32_u24 v11, 0x7fff, v11
    v_xor_b32 v10, v10, v11
    v_xor_b32 v10, 0x8000, v10                ; sign ? ~b : b|0x8000
    v_lshlrev_b32 v10, 16, v10
    v_lshrrev_b32 v11, 10, v6
    v_add_u32 v11, s{sOffB}, v11
    v_sub_u32 v11, 0xffff, v11
    v_or_b32 v10, v10, v11                    ; key
    s_nop 1
    v_max_u32_dpp v10, v10, v10 row_ror:8 row_mask:0xf bank_mask:0xf
    v_mov_b32 v11, v10
    s_nop 1
    v_permlane16_swap_b32 v10, v11
    v_max_u32 v10, v10, v11
    v_mov_b32 v11, v10
    s_nop 1
    v_permlane32_swap_b32 v10, v11
    v_max_u32 v10, v10, v11
    v_mov_b32 v11, 0
    s_mov_b64 exec, 1
    buffer_atomic_umax v10, v11, s[{S_DBG}:{S_DBG+3}], 0 offen
    s_mov_b64 exec, -1
    """)
    p.e("L_nospec:")
    p.e(f"""
    v_and_b32 v10, 15, v{vLane}
    v_mul_u32_u24 v10, {TSTR}, v10
    v_lshrrev_b32 v11, 4, v{vLane}
    v_lshlrev_b32 v11, 4, v11
    v_add_u32 v10, v10, v11
    v_add_u32 v{vB}, {XNB}, v10
    """)
    p.add(Ins("s_barrier", ldsrd=['tile']))
    stamp(p, cfg, 1)
    if cfg.stop == 'ln':
        dump_tile(p, XNB); return finish(p, cfg)
    def trig(p):
        p.e(f"""
        s_cmp_eq_u32 s{sCnt}, s{sTrig}
        s_cbranch_scc0 L_notrig
        v_mov_b32 v10, 1
        v_mov_b32 v11, 4
        s_mov_b64 exec, 1
        """)
        i = Ins(f"buffer_atomic_add v10, v11, s[{S_DBG}:{S_DBG+3}], 0 offen"); i.kind = 'ctl'
        p.add(i)
        p.e("s_mov_b64 exec, -1")
        p.e("L_notrig:")
    gemm(p, cfg, 'q', trig)
    stamp(p, cfg, 2)
    from gen_attn import attn
    attn(p, cfg)
    return finish(p, cfg)

def dump_tile(p, base):
    p.e(f"""
    s_waitcnt vmcnt(0) lgkmcnt(0)
    s_barrier
    v_lshlrev_b32 v10, 4, v{vLane}
    s_lshl_b32 s{sT0}, s2, 16
    s_add_u32 s{sT0}, s{sT0}, {WS_DBG}
    s_lshl_b32 s{sT1}, s{sW}, 4
    s_mov_b32 s{sT2}, 0
    L_dump:
    s_add_u32 s{sT3}, s{sT1}, s{sT2}
    s_mul_i32 s{sT4}, s{sT3}, {TSTR}
    s_add_u32 s{sT4}, s{sT4}, {base}
    v_add_u32 v11, s{sT4}, v10
    ds_read_b128 v[12:15], v11
    s_lshl_b32 s{sT4}, s{sT3}, 10
    s_add_u32 s{sT4}, s{sT4}, s{sT0}
    s_waitcnt lgkmcnt(0)
    buffer_store_dwordx4 v[12:15], v10, s[{S_WS}:{S_WS+3}], s{sT4} offen
    s_waitcnt vmcnt(0)
    s_add_u32 s{sT2}, s{sT2}, 1
    s_cmp_lt_u32 s{sT2}, 16
    s_cbranch_scc1 L_dump
    """)

def dump_regs(p, file, base, n, slot=0):
    p.e(f"""
    s_waitcnt vmcnt(0) lgkmcnt(0)
    s_nop 15
    s_nop 15
    v_lshlrev_b32 v10, 2, v{vLane}
    s_lshl_b32 s{sT0}, s2, 2
    s_add_u32 s{sT0}, s{sT0}, s{sW}
    s_lshl_b32 s{sT0}, s{sT0}, 16
    s_add_u32 s{sT0}, s{sT0}, {WS_DBG}
    """)
    for k in range(n):
        if file == 'a':
            p.e(f"v_accvgpr_read_b32 v11, a{base+k}")
            p.e(f"buffer_store_dword v11, v10, s[{S_WS}:{S_WS+3}], s{sT0} offen")
        else:
            p.e(f"buffer_store_dword v{base+k}, v10, s[{S_WS}:{S_WS+3}], s{sT0} offen")
        p.e(f"s_add_u32 s{sT0}, s{sT0}, 256")
    p.e("s_waitcnt vmcnt(0)")

def finish(p, cfg):
    if cfg.stamps:
        p.e(f"""
        s_waitcnt lgkmcnt(0)
        s_lshl_b32 s{sT0}, s2, 2
        s_add_u32 s{sT0}, s{sT0}, s{sW}
        s_lshl_b32 s{sT0}, s{sT0}, 6
        s_add_u32 s{sT0}, s{sT0}, {WS_DBG + 0x4000000 - WS_DBG if False else 0x8000000}
        v_mov_b32 v10, 0
        """)
        for n in range(8):
            p.e(f"v_mov_b32 v12, s{sTS+2*n}" if sTS + 2*n < 102 else "v_mov_b32 v12, 0")
            p.e(f"s_mov_b64 exec, 1")
            p.e(f"buffer_store_dword v12, v10, s[{S_WS}:{S_WS+3}], s{sT0} offen offset:{n*4}")
            p.e(f"s_mov_b64 exec, -1")
    p.e("L_end:")
    p.e("s_endpgm")
    p.autowait()
    p.fix_hazards()
    return p


def k3(cfg):
    from gen_k3 import k3 as f
    return f(cfg)

def desc(name, vgpr, sgpr, accum):
    return f"""
.section .rodata,"a"
.p2align 6
.amdhsa_kernel {name}
  .amdhsa_next_free_vgpr {vgpr}
  .amdhsa_next_free_sgpr {sgpr}
  .amdhsa_accum_offset {accum}
  .amdhsa_group_segment_fixed_size 0
  .amdhsa_kernarg_size 104
  .amdhsa_user_sgpr_count 2
  .amdhsa_user_sgpr_kernarg_segment_ptr 1
  .amdhsa_system_sgpr_workgroup_id_x 1
  .amdhsa_float_denorm_mode_32 3
.end_amdhsa_kernel
"""

def build(cfg, with_k3=True):
    hdr = open('cdna_kernels/' + NAME + '.s.ref').read().split('; Override launch geometry')[0]
    out = hdr
    out += f"; @launch kernel={K2} grid=(256,1,1) block=(256,1,1) lds={LDS_BYTES}\n"
    if with_k3: out += f"; @launch kernel={K3} grid=(256,1,1) block=(512,1,1) lds=0\n"
    out += '.amdgcn_target "amdgcn-amd-amdhsa--gfx950"\n.text\n'
    out += f".globl {K2}\n.p2align 8\n.type {K2},@function\n{K2}:\n" + k2(cfg).text()
    if with_k3:
        out += f".globl {K3}\n.p2align 8\n.type {K3},@function\n{K3}:\n" + k3(cfg).text()
    out += desc(K2, 512, 102, 256)
    if with_k3: out += desc(K3, 64, 64, 64)
    return out

def main():
    import argparse
    ap = argparse.ArgumentParser()
    ap.add_argument('-o', default='cdna_kernels/' + NAME + '.s')
    ap.add_argument('--stop'); ap.add_argument('--stamps', action='store_true'); ap.add_argument('--nok3', action='store_true')
    a = ap.parse_args()
    open(a.o, 'w').write(build(Cfg(stop=a.stop, stamps=a.stamps), not a.nok3))

if __name__ == "__main__":
    import gen
    gen.main()
```

```python
import sys
HDR = """; @launch grid=(256,1,1) block=(256,1,1) lds={lds}
.amdgcn_target "amdgcn-amd-amdhsa--gfx950"
.text
.globl mb_kernel
.p2align 8
.type mb_kernel,@function
mb_kernel:
"""
FTR = """
.section .rodata,"a"
.p2align 6
.amdhsa_kernel mb_kernel
  .amdhsa_next_free_vgpr 512
  .amdhsa_next_free_sgpr 96
  .amdhsa_accum_offset 256
  .amdhsa_group_segment_fixed_size 0
  .amdhsa_kernarg_size 24
  .amdhsa_user_sgpr_count 2
  .amdhsa_user_sgpr_kernarg_segment_ptr 1
  .amdhsa_system_sgpr_workgroup_id_x 1
.end_amdhsa_kernel
"""
def prologue():
    return """
    s_cmp_ge_u32 s2, 256
    s_cbranch_scc1 L_done
    s_load_dwordx4 s[4:7], s[0:1], 0
    s_load_dwordx2 s[12:13], s[0:1], 16
    s_waitcnt lgkmcnt(0)
    s_mov_b32 s16, s4
    s_and_b32 s17, s5, 0xffff
    s_mov_b32 s18, 0x2000000
    s_mov_b32 s19, 0x20000
    s_mov_b32 s20, s12
    s_and_b32 s21, s13, 0xffff
    s_mov_b32 s22, 0x100000
    s_mov_b32 s23, 0x20000
    v_lshrrev_b32 v1, 6, v0       ; wave
    v_and_b32 v2, 63, v0          ; lane
    s_nop 0
    v_readfirstlane_b32 s24, v1
    s_and_b32 s25, s2, 7          ; g
"""
def epilogue():
    return """
    s_memtime s[32:33]
    s_memrealtime s[50:51]
    s_waitcnt lgkmcnt(0)
    s_lshl_b32 s26, s2, 2
    s_add_u32 s26, s26, s24
    s_lshl_b32 s26, s26, 4
    v_mov_b32 v10, s30
    v_mov_b32 v11, s31
    v_mov_b32 v12, s32
    v_mov_b32 v13, s33
    v_mov_b32 v14, s26
    v_cmp_eq_u32 vcc, 0, v2
    s_and_saveexec_b64 s[34:35], vcc
    buffer_store_dwordx4 v[10:13], v14, s[20:23], 0 offen
    v_mov_b32 v10, s48
    v_mov_b32 v11, s49
    v_mov_b32 v12, s50
    v_mov_b32 v13, s51
    v_add_u32 v14, 0x10000, v14
    s_nop 1
    buffer_store_dwordx4 v[10:13], v14, s[20:23], 0 offen
    s_waitcnt vmcnt(0)
L_done:
    s_endpgm
"""
def gen(mode, depth, passes=5):
    o = []
    lds = 0
    o.append(prologue())
    if mode == 'x2':
        o.append("""
    s_lshl_b32 s27, s25, 2
    s_add_u32 s27, s27, s24        ; head
    s_lshl_b32 s27, s27, 8         ; *256 bytes
    v_and_b32 v3, 31, v2
    v_lshlrev_b32 v3, 3, v3        ; i*8
    v_lshrrev_b32 v4, 5, v2
    v_lshlrev_b32 v4, 16, v4       ; hh*8*8192
    v_add_u32 v3, v3, v4
    v_add_u32 v20, s27, v3
""")
        for r in range(1, 8):
            o.append(f"    v_add_u32 v{20+r}, {r*8192}, v20")
        nld = 8; w = 2
        def load(t_slot, r):
            reg = 32 + t_slot*16 + 2*r
            return f"    buffer_load_dwordx2 v[{reg}:{reg+1}], v{20+r}, s[16:19], s28 offen"
        step = 16*8192
        steps = 32
    elif mode == 'x4':
        o.append("""
    s_lshl_b32 s27, s25, 2
    s_add_u32 s27, s27, s24        ; head
    s_lshl_b32 s27, s27, 8         ; *256 bytes
    v_and_b32 v3, 15, v2
    v_lshlrev_b32 v3, 4, v3
    v_lshrrev_b32 v4, 4, v2
    v_lshlrev_b32 v4, 13, v4
    v_add_u32 v3, v3, v4
    v_add_u32 v20, s27, v3
""")
        for r in range(1, 4):
            o.append(f"    v_add_u32 v{20+r}, {r*4*8192}, v20")
        nld = 4
        def load(t_slot, r):
            reg = 32 + t_slot*16 + 4*r
            return f"    buffer_load_dwordx4 v[{reg}:{reg+3}], v{20+r}, s[16:19], s28 offen"
        step = 16*8192
        steps = 32
    elif mode == 'dma':
        lds = depth*4096*4
        o.append("""
    s_lshl_b32 s27, s25, 2
    s_add_u32 s27, s27, s24        ; head
    s_lshl_b32 s27, s27, 8         ; *256 bytes
    v_and_b32 v3, 15, v2
    v_lshlrev_b32 v3, 4, v3
    v_lshrrev_b32 v4, 4, v2
    v_lshlrev_b32 v4, 13, v4
    v_add_u32 v3, v3, v4
    v_add_u32 v20, s27, v3
""")
        for r in range(1, 4):
            o.append(f"    v_add_u32 v{20+r}, {r*4*8192}, v20")
        o.append(f"    s_mul_i32 s29, s24, {depth*4096}")
        nld = 4
        def load(t_slot, r):
            return f"    s_add_u32 m0, s29, {t_slot*4096 + r*1024}\n    buffer_load_dwordx4 v{20+r}, s[16:19], s28 offen lds"
        step = 16*8192
        steps = 32
    assert steps % depth == 0
    o.append("    s_mov_b32 s36, 0   ; pass")
    o.append("    s_mov_b32 s28, 0")
    o.append("L_pass:")
    o.append(f"    s_cmp_eq_u32 s36, 1")
    o.append("    s_cbranch_scc0 L_nostamp")
    o.append("    s_memtime s[30:31]")
    o.append("L_nostamp:")
    o.append("    s_mov_b32 s28, 0")
    o.append("    s_mov_b32 s37, 0")
    o.append("L_loop:")
    for s in range(depth):
        for r in range(nld):
            o.append(load(s, r))
        o.append(f"    s_add_u32 s28, s28, {step}")
        o.append(f"    s_waitcnt vmcnt({min(63, nld*(depth-1))})")
    o.append(f"    s_add_u32 s37, s37, {depth}")
    o.append(f"    s_cmp_lt_u32 s37, {steps}")
    o.append("    s_cbranch_scc1 L_loop")
    o.append("    s_add_u32 s36, s36, 1")
    o.append(f"    s_cmp_lt_u32 s36, {passes}")
    o.append("    s_cbranch_scc1 L_pass")
    o.append("    s_waitcnt vmcnt(0)")
    o.append(epilogue())
    return HDR.format(lds=lds) + "\n".join(o) + FTR
if __name__ == "__main__":
  for mode, depth in [('x2', 2), ('x2', 4), ('x2', 8), ('x4', 2), ('x4', 4), ('x4', 8), ('dma', 2), ('dma', 4), ('dma', 8)]:
      open(f"mb1_{mode}_{depth}.s", "w").write(gen(mode, depth))
```

```python
from gen_mb1 import HDR, FTR, prologue, epilogue
P2 = "s_and_b32 s25, s2, 1\n    s_bfe_u32 s26, s2, 0x10001\n    s_lshl_b32 s26, s26, 2\n    s_or_b32 s25, s25, s26\n    s_lshr_b32 s26, s2, 3\n    s_and_b32 s26, s26, 1\n    s_lshl_b32 s26, s26, 1\n    s_or_b32 s25, s25, s26"
ADJ = "s_and_b32 s25, s2, 3\n    s_lshl_b32 s25, s25, 1\n    s_lshr_b32 s26, s2, 3\n    s_and_b32 s26, s26, 1\n    s_or_b32 s25, s25, s26"
def gen(lane_rows, rowf, pair, passes=5, depth=2):
    o = [prologue().replace("s_and_b32 s25, s2, 7          ; g", pair)]
    o.append(f"""
    s_lshl_b32 s27, s25, 2
    s_add_u32 s27, s27, s24
    s_lshl_b32 s27, s27, 8
    v_and_b32 v3, 15, v2
    v_lshlrev_b32 v3, 4, v3
    v_lshrrev_b32 v4, 4, v2
    v_mul_u32_u24 v4, {lane_rows*8192}, v4
    v_add_u32 v3, v3, v4
    v_add_u32 v19, s27, v3""")
    for r in range(8): o.append(f"    v_add_u32 v{20+r}, {rowf(r)*8192}, v19")
    o.append("    s_mov_b32 s36, 0\nL_pass:\n    s_cmp_eq_u32 s36, 1\n    s_cbranch_scc0 L_ns\n    s_memtime s[30:31]\n    s_memrealtime s[48:49]\nL_ns:\n    s_mov_b32 s28, 0\n    s_mov_b32 s37, 0\nL_loop:")
    for s in range(depth + 1):
        for r in range(8): o.append(f"    buffer_load_dwordx4 v[{32+32*s+4*r}:{35+32*s+4*r}], v{20+r}, s[16:19], s28 offen")
        o.append(f"    s_add_u32 s28, s28, {32*8192}\n    s_and_b32 s28, s28, 0x3fffff\n    s_waitcnt vmcnt({8*depth})")
    o.append(f"    s_add_u32 s37, s37, {depth+1}\n    s_cmp_lt_u32 s37, 15\n    s_cbranch_scc1 L_loop\n    s_add_u32 s36, s36, 1\n    s_cmp_lt_u32 s36, {passes}\n    s_cbranch_scc1 L_pass\n    s_waitcnt vmcnt(0)")
    o.append(epilogue())
    return HDR.format(lds=163840) + "\n".join(o) + FTR
V = {'a': (8, lambda r: r), 'b': (1, lambda r: 4*r), 'c': (4, lambda r: (r & 3) + 16*(r >> 2)), 'd': (2, lambda r: (r & 1) + 8*(r >> 1))}
names = []
for k, (lr, f) in V.items():
    for pn, pr in (('adj', ADJ), ('p2', P2)):
        open(f"mb15_{k}_{pn}.s", "w").write(gen(lr, f, pr)); names.append(f"mb15_{k}_{pn}.s")
print(" ".join(names)); print(str(["dev/" + n for n in names]).replace("'", '"'))
```
